```python
import torch

def _softmax(x, axis=-1):
    return torch.softmax(x, dim=axis)
def _gelu(x):
    return torch.nn.functional.gelu(x, approximate="tanh")
def _silu(x):
    return torch.nn.functional.silu(x)
def _sigmoid(x):
    return torch.sigmoid(x)
def _layernorm(x, axis=-1, eps=1e-5):
    m = x.mean(dim=axis, keepdim=True)
    v = x.var(dim=axis, keepdim=True, unbiased=False)
    return (x - m) / torch.sqrt(v + eps)
def _scatter_add(tgt, idx, src, axis=0):
    return tgt.clone().index_add_(axis, idx, src)
def _segment_sum(src, seg, n):
    out = torch.zeros((n,) + src.shape[1:], dtype=src.dtype)
    return out.index_add_(0, seg, src)
def _pad(x, pw):
    flat = tuple(v for pair in reversed(pw) for v in pair)
    return torch.nn.functional.pad(x, flat)

kernel_name = 'standalone__weight_only_int_quip__prompt'

def setup_inputs():

    _w = (lambda a: (lambda t: t.to(torch.bfloat16) if t.is_floating_point() else t)(torch.as_tensor(a)))
    B, S, D, F = 1, 2048, 512, 1376
    G = 128 if 128 > 0 else D
    D = (D // G) * G
    ng = D // G
    bits = 4 if 4 > 0 else 4
    qmax = 1 << bits
    qw = torch.randint(0, qmax, (D, F)).to(torch.int32)
    U, _ = (lambda *_a, **_k: torch.linalg.qr(*[torch.as_tensor(_x).float() for _x in _a], **_k))((lambda *s: torch.randn(*s, dtype=torch.bfloat16) * 0.05)(D, D))
    V, _ = (lambda *_a, **_k: torch.linalg.qr(*[torch.as_tensor(_x).float() for _x in _a], **_k))((lambda *s: torch.randn(*s, dtype=torch.bfloat16) * 0.05)(F, F))
    return {
        "x": _w((lambda *s: torch.randn(*s, dtype=torch.bfloat16) * 0.05)(B, S, D)),
        "qw": _w(qw),
        "scales": _w(torch.abs((lambda *s: torch.randn(*s, dtype=torch.bfloat16) * 0.05)(ng, F)) * 0.02 + 0.005),
        "zeros": _w(torch.full((ng, F), qmax / 2.0, dtype=float)),
        "U": _w(U.to(float)),
        "V": _w(V.to(float)),
    }

def reference(x, qw, scales, zeros, U, V):
    B, S, D = x.shape
    ng, F = scales.shape
    G = D // ng
    s = (lambda x, n, axis: torch.repeat_interleave(x, n, dim=axis))(scales, G, axis=0)
    z = (lambda x, n, axis: torch.repeat_interleave(x, n, dim=axis))(zeros, G, axis=0)
    wq = ((lambda x, dt: x.to(dt))(qw, x.dtype) - z) * s
    xr = torch.einsum("bsd,de->bse", x, U)
    h  = torch.einsum("bse,ef->bsf", xr, wq)
    y  = torch.einsum("bsf,fg->bsg", h, V)
    return y
```

```python
import sys

NAME = "standalone__weight_only_int_quip__prompt"
K1 = NAME + "_kernel"
K2 = "quip_k2_kernel"

XR_OFF = 0
XR_SIZE = 2048 * 512 * 2
PT_OFF = XR_SIZE
PT_SIZE = 86 * 16 * 1024

class A:
    def __init__(self):
        self.l = []
    def __call__(self, s):
        self.l.append("    " + s)
    def lab(self, s):
        self.l.append(s + ":")
    def c(self, s):
        self.l.append("    ; " + s)
    def text(self):
        return "\n".join(self.l) + "\n"

def vr(b, n=4):
    return "v[%d:%d]" % (b, b + n - 1)
def sr(b, n=4):
    return "s[%d:%d]" % (b, b + n - 1)

def srd(a, d, lo, hi, size):
    a("s_mov_b32 s%d, s%d" % (d, lo))
    a("s_and_b32 s%d, s%d, 0xffff" % (d + 1, hi))
    a("s_mov_b32 s%d, 0x%x" % (d + 2, size))
    a("s_mov_b32 s%d, 0x20000" % (d + 3))

def srd_off(a, d, lo, hi, off, size):
    a("s_add_u32 s%d, s%d, 0x%x" % (d, lo, off))
    a("s_addc_u32 s%d, s%d, 0" % (d + 1, hi))
    a("s_and_b32 s%d, s%d, 0xffff" % (d + 1, d + 1))
    a("s_mov_b32 s%d, 0x%x" % (d + 2, size))
    a("s_mov_b32 s%d, 0x20000" % (d + 3))

MFMA = "v_mfma_f32_16x16x32_bf16"

LDS_A = 131072
LDS_S = 139264
LDS_Z = LDS_S + 6144
K1_LDS = LDS_Z + 6144

def gen_k1(a):
    a.lab(K1)
    a("s_cmp_ge_u32 s2, 256")
    a("s_cbranch_scc1 K1_done")
    a("s_load_dwordx16 s[16:31], s[0:1], 0")
    a("s_load_dwordx2 s[32:33], s[0:1], 64")
    a("v_and_b32 v1, 63, v0")
    a("v_lshrrev_b32 v2, 6, v0")
    a("s_and_b32 s4, s2, 7")
    a("v_readfirstlane_b32 s3, v2")
    a("s_lshr_b32 s5, s2, 3")
    a("s_cmp_ge_u32 s5, 30")
    a("s_cbranch_scc1 K1_done")
    a("s_cmp_ge_u32 s5, 22")
    a("s_cbranch_scc1 K1_a")
    gen_1b(a)
    a.lab("K1_a")
    gen_1a(a)
    a.lab("K1_done")
    a("s_endpgm")

def gen_1b(a):
    SQ, SV, SS, SZ, SP = 36, 40, 44, 48, 52
    a.c("==== 1b: P^T tile (32 e x 128 g) ====")
    a("s_lshr_b32 s6, s4, 1")
    a("s_mul_i32 s6, s6, 22")
    a("s_add_u32 s6, s6, s5")
    a("s_lshr_b32 s7, s6, 3")
    a("s_and_b32 s6, s6, 7")
    a("s_and_b32 s8, s4, 1")
    a("s_lshl_b32 s8, s8, 3")
    a("s_add_u32 s6, s6, s8")
    a("v_lshrrev_b32 v28, 3, v1")
    a("v_and_b32 v29, 7, v1")
    a("v_lshrrev_b32 v30, 4, v1")
    a("v_and_b32 v31, 15, v1")
    a("s_lshr_b32 s9, s6, 2")
    a("s_mul_i32 s9, s9, 2752")
    a("v_lshlrev_b32 v32, 2, v0")
    a("v_add_u32 v32, s9, v32")
    a("s_lshl_b32 s10, s6, 5")
    a("v_add_u32 v33, s10, v28")
    a("s_movk_i32 s11, 5504")
    a("v_mul_lo_u32 v33, v33, s11")
    a("v_lshl_add_u32 v2, v29, 4, v33")
    a("v_add_u32 v3, %d, v2" % (8 * 5504))
    a("v_add_u32 v4, %d, v2" % (16 * 5504))
    a("v_add_u32 v5, %d, v2" % (24 * 5504))
    a("v_lshrrev_b32 v33, 1, v31")
    a("v_xor_b32 v33, v33, v30")
    a("v_and_b32 v34, 1, v1")
    a("v_lshl_or_b32 v35, v33, 1, v34")
    a("v_lshlrev_b32 v35, 4, v35")
    a("v_mul_u32_u24 v36, 2752, v30")
    a("s_lshl_b32 s12, s7, 8")
    a("v_add3_u32 v6, v35, v36, s12")
    a("v_xor_b32 v35, 128, v35")
    a("v_add3_u32 v7, v35, v36, s12")
    a("s_waitcnt lgkmcnt(0)")
    srd(a, SQ, 18, 19, 512 * 5504)
    srd(a, SV, 26, 27, 1376 * 2752)
    srd(a, SS, 20, 21, 4 * 2752)
    srd(a, SZ, 22, 23, 4 * 2752)
    srd_off(a, SP, 32, 33, PT_OFF, PT_SIZE)
    for r in range(3):
        a("buffer_load_dword v%d, v32, s[%d:%d], 0 offen offset:%d" % (40 + r, SS, SS + 3, 1024 * r))
    for r in range(3):
        a("buffer_load_dword v%d, v32, s[%d:%d], 0 offen offset:%d" % (43 + r, SZ, SZ + 3, 1024 * r))
    a("s_lshl_b32 s56, s3, 7")
    a("s_mul_i32 s57, s3, 88064")
    a("s_lshl_b32 s59, s3, 15")

    def issue_q(k):
        slot = k % 4
        a("s_add_u32 s58, s56, %d" % (512 * k))
        for i in range(4):
            a("buffer_load_dwordx4 %s, v%d, s[%d:%d], s58 offen" % (vr(80 + slot * 16 + i * 4), 2 + i, SQ, SQ + 3))
    def issue_v(k):
        slot = k % 4
        for b in range(8):
            if b % 4 == 0:
                a("s_add_u32 m0, s59, %d" % (slot * 8192 + (b // 4) * 4096))
            const = k * 4 * 88064 + 4 * b * 2752 - (b % 4) * 1024
            a("s_add_u32 s58, s57, %d" % const)
            a("buffer_load_dwordx4 v%d, s[%d:%d], s58 offen offset:%d lds" % (6 + ((b >> 1) & 1), SV, SV + 3, (b % 4) * 1024))
    for k in range(4):
        issue_q(k)
        issue_v(k)
    a("v_bfe_u32 v33, v1, 2, 2")
    a("v_and_b32 v34, 3, v1")
    a("v_lshl_add_u32 v35, v30, 3, v33")
    a("v_lshlrev_b32 v35, 8, v35")
    a("v_and_b32 v36, 1, v30")
    a("v_lshl_add_u32 v36, v36, 2, v33")
    a("v_lshl_add_u32 v35, v36, 5, v35")
    a("v_lshl_add_u32 v35, v34, 3, v35")
    a("v_add_u32 v8, s59, v35")
    for n in range(1, 8):
        a("v_xor_b32 v%d, %d, v8" % (8 + n, n * 32))
    a("s_lshl_b32 s13, s3, 11")
    a("s_add_u32 s13, s13, %d" % LDS_A)
    a("v_lshrrev_b32 v33, 5, v1")
    a("v_lshrrev_b32 v34, 1, v29")
    a("v_and_b32 v35, 1, v29")
    a("v_lshlrev_b32 v35, 3, v35")
    a("v_lshl_add_u32 v35, v28, 6, v35")
    a("v_add_u32 v35, s13, v35")
    for x in range(2):
        a("v_add_u32 v36, %d, v33" % (2 * x))
        a("v_sub_u32 v36, 0, v36")
        a("v_and_b32 v36, 3, v36")
        a("v_xor_b32 v36, v36, v34")
        a("v_lshl_add_u32 v36, v36, 4, v35")
        a("v_add_u32 v%d, %d, v36" % (16 + x, 512 * x))
    a("v_lshrrev_b32 v33, 2, v31")
    a("v_sub_u32 v33, 0, v33")
    a("v_and_b32 v33, 3, v33")
    a("v_xor_b32 v33, v33, v30")
    a("v_lshlrev_b32 v33, 4, v33")
    a("v_lshl_add_u32 v33, v31, 6, v33")
    a("v_add_u32 v18, s13, v33")
    a("s_add_u32 s14, s56, %d" % LDS_S)
    a("v_lshl_add_u32 v19, v29, 4, s14")
    a("v_lshlrev_b32 v46, 3, v0")
    a("v_add_u32 v46, %d, v46" % LDS_S)
    a("s_mov_b32 s15, 0x4b800000")
    a("s_waitcnt vmcnt(48)")
    for r in range(3):
        a("v_lshlrev_b32 v48, 16, v%d" % (40 + r))
        a("v_and_b32 v49, 0xffff0000, v%d" % (40 + r))
        a("v_lshlrev_b32 v50, 16, v%d" % (43 + r))
        a("v_and_b32 v51, 0xffff0000, v%d" % (43 + r))
        a("v_mul_f32 v52, -v50, v48")
        a("v_mul_f32 v53, -v51, v49")
        a("v_mul_f32 v48, s15, v48")
        a("v_mul_f32 v49, s15, v49")
        a("ds_write_b64 v46, v[48:49] offset:%d" % (r * 2048))
        a("ds_write_b64 v46, v[52:53] offset:%d" % (6144 + r * 2048))
    a("s_waitcnt lgkmcnt(0)")
    a("s_barrier")

    NK = 11
    def acc(t, n):
        return 144 + (t * 8 + n) * 4
    for k in range(NK):
        slot = k % 4
        a.c("substep %d" % k)
        a("s_waitcnt vmcnt(%d)" % (12 * (min(k + 3, NK - 1) - k)))
        a("ds_read_b128 v[20:23], v19 offset:%d" % (k * 512))
        a("ds_read_b128 v[24:27], v19 offset:%d" % (6144 + k * 512))
        for n in range(4):
            for h in range(2):
                a("ds_read_b64_tr_b16 v[%d:%d], v%d offset:%d" % (48 + n * 4 + 2 * h, 48 + n * 4 + 2 * h + 1, 8 + n, slot * 8192 + h * 1024))
        a("s_waitcnt lgkmcnt(8)")
        for i in range(4):
            q = 80 + slot * 16 + i * 4
            t = 28 + (i % 2) * 4
            p = 36 + (i % 2) * 2
            for e in range(4):
                a("v_fma_mix_f32 v%d, v%d, v%d, v%d op_sel_hi:[1,0,0]" % (t + e, q + e, 20 + e, 24 + e))
            a("v_cvt_pk_bf16_f32 v%d, v%d, v%d" % (p, t, t + 1))
            a("v_cvt_pk_bf16_f32 v%d, v%d, v%d" % (p + 1, t + 2, t + 3))
            a("ds_write_b64 v%d, v[%d:%d] offset:%d" % (16 + (i & 1), p, p + 1, (i >> 1) * 1024))
        if k + 4 < NK:
            issue_q(k + 4)
        a("ds_read_b128 v[40:43], v18")
        a("ds_read_b128 v[44:47], v18 offset:1024")
        for n in range(4, 8):
            for h in range(2):
                a("ds_read_b64_tr_b16 v[%d:%d], v%d offset:%d" % (48 + n * 4 + 2 * h, 48 + n * 4 + 2 * h + 1, 8 + n, slot * 8192 + h * 1024))
        a("s_waitcnt lgkmcnt(8)")
        for n in range(4):
            for t in range(2):
                c = "0" if k == 0 else vr(acc(t, n))
                a("%s %s, %s, %s, %s" % (MFMA, vr(acc(t, n)), vr(40 + 4 * t), vr(48 + 4 * n), c))
        a("s_waitcnt lgkmcnt(0)")
        if k + 4 < NK:
            issue_v(k + 4)
        for n in range(4, 8):
            for t in range(2):
                c = "0" if k == 0 else vr(acc(t, n))
                a("%s %s, %s, %s, %s" % (MFMA, vr(acc(t, n)), vr(40 + 4 * t), vr(48 + 4 * n), c))
    a("s_lshl_b32 s13, s3, 12")
    a("v_lshlrev_b32 v2, 4, v1")
    a("v_add_u32 v3, s13, v2")
    a("s_lshl_b32 s13, s3, 14")
    a("v_add_u32 v4, s13, v2")
    a("v_lshrrev_b32 v30, 4, v1")
    a("v_bfe_u32 v5, v1, 2, 1")
    a("v_lshlrev_b32 v5, 14, v5")
    a("v_lshl_add_u32 v5, v30, 8, v5")
    a("v_bfe_u32 v6, v1, 3, 1")
    a("v_lshl_add_u32 v5, v6, 6, v5")
    a("v_and_b32 v6, 3, v1")
    a("v_lshl_add_u32 v5, v6, 4, v5")
    a("s_lshl_b32 s13, s7, 2")
    a("s_add_u32 s13, s13, s3")
    a("s_lshl_b32 s13, s13, 15")
    a("s_lshl_b32 s14, s6, 10")
    a("s_add_u32 s13, s13, s14")
    a("s_barrier")
    for wd in range(4):
        for nl in range(2):
            for t in range(2):
                a("ds_write_b128 v3, %s offset:%d" % (vr(acc(t, 2 * wd + nl)), wd * 16384 + (2 * nl + t) * 1024))
    a("s_waitcnt lgkmcnt(0)")
    a("s_barrier")
    for src in range(4):
        for idx in range(4):
            a("ds_read_b128 %s, v4 offset:%d" % (vr(48 + (src * 4 + idx) * 4), src * 4096 + idx * 1024))
    a("s_waitcnt lgkmcnt(8)")
    for j in range(16):
        a("v_add_f32 v%d, v%d, v%d" % (48 + j, 48 + j, 64 + j))
    a("s_waitcnt lgkmcnt(0)")
    for j in range(16):
        a("v_add_f32 v%d, v%d, v%d" % (80 + j, 80 + j, 96 + j))
    for j in range(16):
        a("v_add_f32 v%d, v%d, v%d" % (48 + j, 48 + j, 80 + j))
    for nl in range(2):
        b = 48 + nl * 8
        d = 112 + nl * 4
        for j in range(4):
            a("v_cvt_pk_bf16_f32 v%d, v%d, v%d" % (d + j, b + 2 * j, b + 2 * j + 1))
        a("buffer_store_dwordx4 %s, v5, s[%d:%d], s13 offen offset:%d" % (vr(d), SP, SP + 3, nl * 128))
    a("s_endpgm")

def gen_1a(a):
    SX, SU, SO = 36, 40, 44
    a.c("==== 1a: xr tile (128 s x 128 e) ====")
    a("s_sub_u32 s5, s5, 22")
    a("s_and_b32 s6, s5, 1")
    a("s_lshl_b32 s7, s4, 1")
    a("s_add_u32 s6, s6, s7")
    a("s_lshr_b32 s7, s5, 1")
    a("v_lshrrev_b32 v28, 3, v1")
    a("v_and_b32 v29, 7, v1")
    a("v_lshrrev_b32 v30, 4, v1")
    a("v_and_b32 v31, 15, v1")
    a("s_lshl_b32 s8, s6, 7")
    a("s_lshl_b32 s9, s3, 5")
    a("s_add_u32 s8, s8, s9")
    a("v_add_u32 v33, s8, v28")
    a("v_lshlrev_b32 v33, 10, v33")
    a("v_xor_b32 v34, v29, v30")
    a("v_lshl_add_u32 v2, v34, 4, v33")
    a("v_xor_b32 v3, 64, v2")
    a("v_lshrrev_b32 v33, 1, v31")
    a("v_xor_b32 v33, v33, v30")
    a("v_and_b32 v34, 1, v1")
    a("v_lshl_or_b32 v35, v33, 1, v34")
    a("v_lshlrev_b32 v35, 4, v35")
    a("v_lshl_add_u32 v35, v30, 10, v35")
    a("s_lshl_b32 s8, s7, 8")
    a("v_add_u32 v4, s8, v35")
    a("v_xor_b32 v5, 128, v4")
    a("s_waitcnt lgkmcnt(0)")
    srd(a, SX, 16, 17, 2048 * 1024)
    srd(a, SU, 24, 25, 512 * 1024)
    srd_off(a, SO, 32, 33, XR_OFF, XR_SIZE)
    a("s_lshl_b32 s56, s3, 12")
    a("s_lshl_b32 s57, s3, 14")
    def issue(kk):
        slot = kk % 4
        a("s_add_u32 m0, s56, %d" % (slot * 32768))
        for b in range(4):
            a("s_mov_b32 s58, %d" % (128 * kk + 7168 * b))
            a("buffer_load_dwordx4 v%d, s[%d:%d], s58 offen offset:%d lds" % (2 + (b & 1), SX, SX + 3, b * 1024))
        a("s_add_u32 m0, s56, %d" % (slot * 32768 + 16384))
        for b in range(4):
            a("s_add_u32 s58, s57, %d" % (64 * kk * 1024 + 4 * b * 1024 - b * 1024))
            a("buffer_load_dwordx4 v%d, s[%d:%d], s58 offen offset:%d lds" % (4 + ((b >> 1) & 1), SU, SU + 3, b * 1024))
    for kk in range(3):
        issue(kk)
    a("s_and_b32 s10, s3, 1")
    a("s_lshr_b32 s11, s3, 1")
    a("s_lshl_b32 s12, s11, 13")
    a("v_lshrrev_b32 v33, 1, v31")
    a("v_xor_b32 v33, v33, v30")
    a("v_lshlrev_b32 v33, 4, v33")
    a("v_lshl_add_u32 v33, v31, 7, v33")
    a("v_add_u32 v6, s12, v33")
    a("v_xor_b32 v7, 64, v6")
    a("v_add_u32 v8, 0x10000, v6")
    a("v_add_u32 v9, 0x10000, v7")
    a("v_bfe_u32 v33, v1, 2, 2")
    a("v_and_b32 v34, 3, v1")
    a("v_lshl_add_u32 v35, v30, 3, v33")
    a("v_lshlrev_b32 v35, 8, v35")
    a("v_and_b32 v36, 1, v30")
    a("v_lshl_add_u32 v36, v36, 2, v33")
    a("v_lshl_add_u32 v35, v36, 5, v35")
    a("v_lshl_add_u32 v35, v34, 3, v35")
    a("s_lshl_b32 s12, s10, 7")
    a("v_xor_b32 v35, s12, v35")
    a("v_add_u32 v10, 16384, v35")
    for te in range(1, 4):
        a("v_xor_b32 v%d, %d, v10" % (10 + te, te * 32))
    for te in range(4):
        a("v_add_u32 v%d, 0x10000, v%d" % (14 + te, 10 + te))
    def acc(te, ts):
        return 144 + (te * 4 + ts) * 4
    for kk in range(8):
        slot = kk % 4
        hi = slot // 2
        so = (slot % 2) * 32768
        a.c("1a step %d" % kk)
        a("s_waitcnt vmcnt(%d)" % (8 * (min(kk + 2, 7) - kk)))
        a("s_barrier")
        if kk + 3 < 8:
            issue(kk + 3)
        for hh in range(2):
            for te in range(4):
                for h in range(2):
                    r = 32 + hh * 16 + te * 4 + 2 * h
                    a("ds_read_b64_tr_b16 v[%d:%d], v%d offset:%d" % (r, r + 1, 10 + 4 * hi + te, so + hh * 8192 + h * 1024))
            for ts in range(4):
                a("ds_read_b128 %s, v%d offset:%d" % (vr(64 + hh * 16 + ts * 4), 6 + 2 * hi + hh, so + ts * 2048))
            if hh == 0:
                pass
        a("s_waitcnt lgkmcnt(12)")
        for hh in range(2):
            if hh == 1:
                a("s_waitcnt lgkmcnt(0)")
            for te in range(4):
                for ts in range(4):
                    c = "0" if (kk == 0 and hh == 0) else vr(acc(te, ts))
                    a("%s %s, %s, %s, %s" % (MFMA, vr(acc(te, ts)), vr(32 + hh * 16 + te * 4), vr(64 + hh * 16 + ts * 4), c))
    a("v_lshlrev_b32 v2, 4, v1")
    a("s_lshl_b32 s12, s6, 3")
    a("s_lshl_b32 s13, s11, 2")
    a("s_add_u32 s12, s12, s13")
    a("s_lshl_b32 s12, s12, 4")
    a("s_lshl_b32 s13, s7, 2")
    a("s_add_u32 s12, s12, s13")
    a("s_lshl_b32 s13, s10, 1")
    a("s_add_u32 s12, s12, s13")
    a("s_lshl_b32 s12, s12, 10")
    a("s_nop 7")
    n = 0
    for ts in range(4):
        a("s_add_u32 s13, s12, %d" % (ts * 16384))
        for m in range(2):
            d = 32 + (n % 4) * 4
            n += 1
            a0 = acc(2 * m, ts); a1 = acc(2 * m + 1, ts)
            a("v_cvt_pk_bf16_f32 v%d, v%d, v%d" % (d, a0, a0 + 1))
            a("v_cvt_pk_bf16_f32 v%d, v%d, v%d" % (d + 1, a0 + 2, a0 + 3))
            a("v_cvt_pk_bf16_f32 v%d, v%d, v%d" % (d + 2, a1, a1 + 1))
            a("v_cvt_pk_bf16_f32 v%d, v%d, v%d" % (d + 3, a1 + 2, a1 + 3))
            a("buffer_store_dwordx4 %s, v2, s[%d:%d], s13 offen offset:%d" % (vr(d), SO, SO + 3, m * 1024))
    a("s_endpgm")

K2_STG = 98304
K2_RS = 208
K2_LDS = K2_STG + 4 * 32 * K2_RS

def gen_k2(a):
    SX, SP, SO = 36, 40, 44
    a.lab(K2)
    a("s_cmp_ge_u32 s2, 256")
    a("s_cbranch_scc1 K2_done")
    a("s_load_dwordx2 s[28:29], s[0:1], 48")
    a("s_load_dwordx2 s[32:33], s[0:1], 64")
    a("v_and_b32 v1, 63, v0")
    a("v_lshrrev_b32 v2, 6, v0")
    a("s_and_b32 s4, s2, 7")
    a("v_readfirstlane_b32 s3, v2")
    a("s_lshr_b32 s5, s2, 3")
    a("s_and_b32 s6, s4, 3")
    a("s_lshl_b32 s6, s6, 2")
    a("s_and_b32 s7, s5, 3")
    a("s_add_u32 s6, s6, s7")
    a("s_lshr_b32 s7, s4, 2")
    a("s_lshl_b32 s7, s7, 3")
    a("s_lshr_b32 s8, s5, 2")
    a("s_add_u32 s7, s7, s8")
    a("s_cmp_ge_u32 s7, 15")
    a("s_cbranch_scc1 K2_done")
    a("v_lshlrev_b32 v2, 4, v1")
    a("s_lshl_b32 s9, s6, 3")
    a("s_lshl_b32 s10, s3, 1")
    a("s_add_u32 s9, s9, s10")
    a("s_lshl_b32 s9, s9, 14")
    a("s_lshr_b32 s10, s3, 1")
    a("s_and_b32 s11, s3, 1")
    a("s_mul_i32 s12, s7, 6")
    a("s_mul_i32 s13, s11, 3")
    a("s_add_u32 s12, s12, s13")
    a("s_lshl_b32 s12, s12, 4")
    a("s_add_u32 s12, s12, s10")
    a("s_lshl_b32 s12, s12, 10")
    a("s_mul_i32 s14, s10, 6")
    a("s_add_u32 s14, s14, s13")
    a("s_lshl_b32 s14, s14, 10")
    a("s_waitcnt lgkmcnt(0)")
    srd_off(a, SX, 32, 33, XR_OFF, XR_SIZE)
    srd_off(a, SP, 32, 33, PT_OFF, PT_SIZE)
    srd(a, SO, 28, 29, 2048 * 2752)
    def X(ts, T):
        return 64 + (ts * 16 + T) * 4
    NC = 8
    for c in range(NC):
        a("s_add_u32 m0, s14, %d" % (c * 2 * 6144))
        for i in range(3):
            a("s_add_u32 s58, s12, %d" % (c * 2 * 1024 + i * 16384 - i * 1024 + 0))
            a("buffer_load_dwordx4 v2, s[%d:%d], s58 offen offset:%d lds" % (SP, SP + 3, i * 1024))
        for ts in range(2):
            a("s_add_u32 s58, s9, %d" % (ts * 16384 + c * 2048))
            for tt in range(2):
                a("buffer_load_dwordx4 %s, v2, s[%d:%d], s58 offen offset:%d" % (vr(X(ts, 2 * c + tt)), SX, SX + 3, tt * 1024))
    a("s_mul_i32 s15, s3, %d" % (32 * K2_RS))
    a("s_add_u32 s15, s15, %d" % K2_STG)
    a("v_and_b32 v3, 15, v1")
    a("v_lshrrev_b32 v4, 4, v1")
    a("v_mul_u32_u24 v5, %d, v3" % K2_RS)
    a("v_lshl_add_u32 v5, v4, 4, v5")
    a("v_add_u32 v3, s15, v5")
    a("s_lshl_b32 s16, s6, 7")
    a("s_lshl_b32 s17, s3, 5")
    a("s_add_u32 s16, s16, s17")
    a("s_mul_i32 s16, s16, 2752")
    a("s_mul_i32 s17, s7, 192")
    a("s_movk_i32 s18, 2752")
    for n in range(6):
        a("v_add_u32 v12, %d, v1" % (64 * n))
        a("v_mul_u32_u24 v13, 0xAAAB, v12")
        a("v_lshrrev_b32 v13, 19, v13")
        a("v_mul_u32_u24 v14, 12, v13")
        a("v_sub_u32 v14, v12, v14")
        a("v_mul_u32_u24 v15, %d, v13" % K2_RS)
        a("v_lshl_add_u32 v15, v14, 4, v15")
        a("v_add_u32 v%d, s15, v15" % (240 + n))
        a("v_lshl_add_u32 v14, v14, 4, s17")
        a("v_mul_u32_u24 v15, 2752, v13")
        a("v_add3_u32 v15, v15, v14, s16")
        a("v_cmp_gt_u32 vcc, s18, v14")
        a("v_mov_b32 v13, 0x7fffffff")
        a("s_nop 0")
        a("v_cndmask_b32 v%d, v13, v15, vcc" % (246 + n))
    def acc(ts, g):
        return 192 + (ts * 6 + g) * 4
    def AF(buf, g):
        return 16 + buf * 24 + g * 4
    for c in range(NC):
        a.c("chunk %d" % c)
        a("s_waitcnt vmcnt(%d)" % (7 * (NC - 1 - c)))
        a("s_barrier")
        for tt in range(2):
            T = 2 * c + tt
            for g in range(6):
                off = (T * 6 + g) * 1024
                if off < 65536:
                    a("ds_read_b128 %s, v2 offset:%d" % (vr(AF(tt, g)), off))
                else:
                    a("ds_read_b128 %s, v10 offset:%d" % (vr(AF(tt, g)), off - 65536))
            if c == 0 and tt == 0:
                a("v_add_u32 v10, 0x10000, v2")
        for tt in range(2):
            T = 2 * c + tt
            a("s_waitcnt lgkmcnt(%d)" % (6 if tt == 0 else 0))
            for g in range(6):
                for ts in range(2):
                    cc = "0" if T == 0 else vr(acc(ts, g))
                    a("%s %s, %s, %s, %s" % (MFMA, vr(acc(ts, g)), vr(AF(tt, g)), vr(X(ts, T)), cc))
    a("s_nop 7")
    for ts in range(2):
        for tp in range(3):
            d = 16 + (ts * 3 + tp) * 4
            a0 = acc(ts, 2 * tp); a1 = acc(ts, 2 * tp + 1)
            a("v_cvt_pk_bf16_f32 v%d, v%d, v%d" % (d, a0, a0 + 1))
            a("v_cvt_pk_bf16_f32 v%d, v%d, v%d" % (d + 1, a0 + 2, a0 + 3))
            a("v_cvt_pk_bf16_f32 v%d, v%d, v%d" % (d + 2, a1, a1 + 1))
            a("v_cvt_pk_bf16_f32 v%d, v%d, v%d" % (d + 3, a1 + 2, a1 + 3))
            a("ds_write_b128 v3, %s offset:%d" % (vr(d), ts * 16 * K2_RS + tp * 64))
    for n in range(6):
        a("ds_read_b128 %s, v%d" % (vr(40 + n * 4), 240 + n))
    for n in range(6):
        a("s_waitcnt lgkmcnt(%d)" % (5 - n))
        a("buffer_store_dwordx4 %s, v%d, s[%d:%d], 0 offen" % (vr(40 + n * 4), 246 + n, SO, SO + 3))
    a.lab("K2_done")
    a("s_endpgm")

HDR = open("cdna_kernels/%s.s.ref" % NAME).read().split("; Override launch")[0]

def kd(name, lds=0, vgpr=256, sgpr=102):
    return """.amdhsa_kernel %s
  .amdhsa_next_free_vgpr %d
  .amdhsa_next_free_sgpr %d
  .amdhsa_accum_offset %d
  .amdhsa_group_segment_fixed_size 0
  .amdhsa_kernarg_size 72
  .amdhsa_user_sgpr_count 2
  .amdhsa_user_sgpr_kernarg_segment_ptr 1
  .amdhsa_system_sgpr_workgroup_id_x 1
  .amdhsa_float_denorm_mode_32 3
  .amdhsa_float_denorm_mode_16_64 3
.end_amdhsa_kernel
""" % (name, vgpr, sgpr, min(256, (vgpr + 3) // 4 * 4))

def main(out):
    a = A()
    s = HDR
    s += "; @launch kernel=%s grid=(256,1,1) block=(256,1,1) lds=%d\n" % (K1, K1_LDS)
    s += "; @launch kernel=%s grid=(256,1,1) block=(256,1,1) lds=%d\n" % (K2, K2_LDS)
    s += '.amdgcn_target "amdgcn-amd-amdhsa--gfx950"\n.text\n'
    s += ".globl %s\n.p2align 8\n.type %s,@function\n" % (K1, K1)
    gen_k1(a)
    s += a.text()
    a = A()
    s += ".globl %s\n.p2align 8\n.type %s,@function\n" % (K2, K2)
    gen_k2(a)
    s += a.text()
    s += '.section .rodata,"a"\n.p2align 6\n'
    s += kd(K1) + ".p2align 6\n" + kd(K2)
    open(out, "w").write(s)

if __name__ == "__main__":
    main(sys.argv[1] if len(sys.argv) > 1 else "cdna_kernels/%s.s" % NAME)
```

```python
import sys

NAME = "standalone__weight_only_int_quip__prompt"
K1 = NAME + "_kernel"
K2 = "quip_k2_kernel"

XR_OFF = 0
XR_SIZE = 2048 * 512 * 2
PT_OFF = XR_SIZE
PT_SIZE = 86 * 16 * 1024

class A:
    def __init__(self):
        self.l = []
    def __call__(self, s):
        self.l.append("    " + s)
    def lab(self, s):
        self.l.append(s + ":")
    def c(self, s):
        self.l.append("    ; " + s)
    def text(self):
        return "\n".join(self.l) + "\n"

def vr(b, n=4):
    return "v[%d:%d]" % (b, b + n - 1)
def sr(b, n=4):
    return "s[%d:%d]" % (b, b + n - 1)

def srd(a, d, lo, hi, size):
    a("s_mov_b32 s%d, s%d" % (d, lo))
    a("s_and_b32 s%d, s%d, 0xffff" % (d + 1, hi))
    a("s_mov_b32 s%d, 0x%x" % (d + 2, size))
    a("s_mov_b32 s%d, 0x20000" % (d + 3))

def srd_off(a, d, lo, hi, off, size):
    a("s_add_u32 s%d, s%d, 0x%x" % (d, lo, off))
    a("s_addc_u32 s%d, s%d, 0" % (d + 1, hi))
    a("s_and_b32 s%d, s%d, 0xffff" % (d + 1, d + 1))
    a("s_mov_b32 s%d, 0x%x" % (d + 2, size))
    a("s_mov_b32 s%d, 0x20000" % (d + 3))

MFMA = "v_mfma_f32_16x16x32_bf16"
PROF = False
STAMP_OFF = 32 << 20
nst = [0]
def stamp(a, real=False):
    if not PROF: return
    i = nst[0]; nst[0] += 1
    assert i < 16
    a("%s s[%d:%d]" % ("s_memrealtime" if real else "s_memtime", 64 + 2 * i, 65 + 2 * i))
def stamp_flush(a, kidx):
    if not PROF: return
    a("s_waitcnt lgkmcnt(0)")
    for i in range(nst[0]):
        a("v_writelane_b32 v255, s%d, %d" % (64 + 2 * i, i))
    a("s_load_dwordx2 s[96:97], s[0:1], 64")
    a("s_waitcnt lgkmcnt(0)")
    a("s_add_u32 s96, s96, 0x%x" % STAMP_OFF)
    a("s_addc_u32 s97, s97, 0")
    a("s_and_b32 s97, s97, 0xffff")
    a("s_mov_b32 s98, 0x100000")
    a("s_mov_b32 s99, 0x20000")
    a("s_lshl_b32 s100, s2, 2")
    a("s_add_u32 s100, s100, s3")
    a("s_add_u32 s100, s100, %d" % (kidx * 1024))
    a("s_lshl_b32 s100, s100, 6")
    a("v_lshlrev_b32 v254, 2, v1")
    a("v_cmp_gt_u32 vcc, 16, v1")
    a("s_and_saveexec_b64 s[62:63], vcc")
    a("buffer_store_dword v255, v254, s[96:99], s100 offen")
    a("s_mov_b64 exec, s[62:63]")
    nst[0] = 0

LDS_A = 131072
LDS_S = 139264
LDS_Z = LDS_S + 6144
K1_LDS = LDS_Z + 6144

def gen_k1(a):
    a.lab(K1)
    a("s_cmp_ge_u32 s2, 256")
    a("s_cbranch_scc1 K1_done")
    a("s_load_dwordx16 s[16:31], s[0:1], 0")
    a("s_load_dwordx2 s[32:33], s[0:1], 64")
    stamp(a, True); stamp(a)
    a("v_and_b32 v1, 63, v0")
    a("v_lshrrev_b32 v2, 6, v0")
    a("s_and_b32 s4, s2, 7")
    a("v_readfirstlane_b32 s3, v2")
    a("s_lshr_b32 s5, s2, 3")
    a("s_cmp_ge_u32 s5, 30")
    a("s_cbranch_scc1 K1_done")
    a("s_cmp_ge_u32 s5, 22")
    a("s_cbranch_scc1 K1_a")
    gen_1b(a)
    a.lab("K1_a")
    gen_1a(a)
    a.lab("K1_done")
    a("s_endpgm")

def gen_1b(a):
    SQ, SV, SS, SZ, SP = 36, 40, 44, 48, 52
    a.c("==== 1b: P^T tile (32 e x 128 g) ====")
    a("s_lshr_b32 s6, s4, 1")
    a("s_mul_i32 s6, s6, 22")
    a("s_add_u32 s6, s6, s5")
    a("s_lshr_b32 s7, s6, 3")
    a("s_and_b32 s6, s6, 7")
    a("s_and_b32 s8, s4, 1")
    a("s_lshl_b32 s8, s8, 3")
    a("s_add_u32 s6, s6, s8")
    a("v_lshrrev_b32 v28, 3, v1")
    a("v_and_b32 v29, 7, v1")
    a("v_lshrrev_b32 v30, 4, v1")
    a("v_and_b32 v31, 15, v1")
    a("s_lshr_b32 s9, s6, 2")
    a("s_mul_i32 s9, s9, 2752")
    a("v_lshlrev_b32 v32, 2, v0")
    a("v_add_u32 v32, s9, v32")
    a("s_lshl_b32 s10, s6, 5")
    a("v_add_u32 v33, s10, v28")
    a("s_movk_i32 s11, 5504")
    a("v_mul_lo_u32 v33, v33, s11")
    a("v_lshl_add_u32 v2, v29, 4, v33")
    a("v_add_u32 v3, %d, v2" % (8 * 5504))
    a("v_add_u32 v4, %d, v2" % (16 * 5504))
    a("v_add_u32 v5, %d, v2" % (24 * 5504))
    a("v_lshrrev_b32 v33, 1, v31")
    a("v_xor_b32 v33, v33, v30")
    a("v_and_b32 v34, 1, v1")
    a("v_lshl_or_b32 v35, v33, 1, v34")
    a("v_lshlrev_b32 v35, 4, v35")
    a("v_mul_u32_u24 v36, 2752, v30")
    a("s_lshl_b32 s12, s7, 8")
    a("v_add3_u32 v6, v35, v36, s12")
    a("v_xor_b32 v35, 128, v35")
    a("v_add3_u32 v7, v35, v36, s12")
    a("s_waitcnt lgkmcnt(0)")
    srd(a, SQ, 18, 19, 512 * 5504)
    srd(a, SV, 26, 27, 1376 * 2752)
    srd(a, SS, 20, 21, 4 * 2752)
    srd(a, SZ, 22, 23, 4 * 2752)
    srd_off(a, SP, 32, 33, PT_OFF, PT_SIZE)
    for r in range(3):
        a("buffer_load_dword v%d, v32, s[%d:%d], 0 offen offset:%d" % (40 + r, SS, SS + 3, 1024 * r))
    for r in range(3):
        a("buffer_load_dword v%d, v32, s[%d:%d], 0 offen offset:%d" % (43 + r, SZ, SZ + 3, 1024 * r))
    a("s_lshl_b32 s56, s3, 7")
    a("s_mul_i32 s57, s3, 88064")
    a("s_lshl_b32 s59, s3, 15")

    def issue_q(k):
        slot = k % 4
        a("s_add_u32 s58, s56, %d" % (512 * k))
        for i in range(4):
            a("buffer_load_dwordx4 %s, v%d, s[%d:%d], s58 offen" % (vr(80 + slot * 16 + i * 4), 2 + i, SQ, SQ + 3))
    def issue_v(k):
        slot = k % 4
        for b in range(8):
            if b % 4 == 0:
                a("s_add_u32 m0, s59, %d" % (slot * 8192 + (b // 4) * 4096))
            const = k * 4 * 88064 + 4 * b * 2752 - (b % 4) * 1024
            a("s_add_u32 s58, s57, %d" % const)
            a("buffer_load_dwordx4 v%d, s[%d:%d], s58 offen offset:%d lds" % (6 + ((b >> 1) & 1), SV, SV + 3, (b % 4) * 1024))
    for k in range(4):
        issue_q(k)
        issue_v(k)
    a("v_bfe_u32 v33, v1, 2, 2")
    a("v_and_b32 v34, 3, v1")
    a("v_lshl_add_u32 v35, v30, 3, v33")
    a("v_lshlrev_b32 v35, 8, v35")
    a("v_and_b32 v36, 1, v30")
    a("v_lshl_add_u32 v36, v36, 2, v33")
    a("v_lshl_add_u32 v35, v36, 5, v35")
    a("v_lshl_add_u32 v35, v34, 3, v35")
    a("v_add_u32 v8, s59, v35")
    for n in range(1, 8):
        a("v_xor_b32 v%d, %d, v8" % (8 + n, n * 32))
    a("s_lshl_b32 s13, s3, 11")
    a("s_add_u32 s13, s13, %d" % LDS_A)
    a("v_lshrrev_b32 v33, 5, v1")
    a("v_lshrrev_b32 v34, 1, v29")
    a("v_and_b32 v35, 1, v29")
    a("v_lshlrev_b32 v35, 3, v35")
    a("v_lshl_add_u32 v35, v28, 6, v35")
    a("v_add_u32 v35, s13, v35")
    for x in range(2):
        a("v_add_u32 v36, %d, v33" % (2 * x))
        a("v_sub_u32 v36, 0, v36")
        a("v_and_b32 v36, 3, v36")
        a("v_xor_b32 v36, v36, v34")
        a("v_lshl_add_u32 v36, v36, 4, v35")
        a("v_add_u32 v%d, %d, v36" % (16 + x, 512 * x))
    a("v_lshrrev_b32 v33, 2, v31")
    a("v_sub_u32 v33, 0, v33")
    a("v_and_b32 v33, 3, v33")
    a("v_xor_b32 v33, v33, v30")
    a("v_lshlrev_b32 v33, 4, v33")
    a("v_lshl_add_u32 v33, v31, 6, v33")
    a("v_add_u32 v18, s13, v33")
    a("s_add_u32 s14, s56, %d" % LDS_S)
    a("v_lshl_add_u32 v19, v29, 4, s14")
    a("v_lshlrev_b32 v46, 3, v0")
    a("v_add_u32 v46, %d, v46" % LDS_S)
    a("s_mov_b32 s15, 0x4b800000")
    stamp(a)
    a("s_waitcnt vmcnt(48)")
    stamp(a)
    for r in range(3):
        a("v_lshlrev_b32 v48, 16, v%d" % (40 + r))
        a("v_and_b32 v49, 0xffff0000, v%d" % (40 + r))
        a("v_lshlrev_b32 v50, 16, v%d" % (43 + r))
        a("v_and_b32 v51, 0xffff0000, v%d" % (43 + r))
        a("v_mul_f32 v52, -v50, v48")
        a("v_mul_f32 v53, -v51, v49")
        a("v_mul_f32 v48, s15, v48")
        a("v_mul_f32 v49, s15, v49")
        a("ds_write_b64 v46, v[48:49] offset:%d" % (r * 2048))
        a("ds_write_b64 v46, v[52:53] offset:%d" % (6144 + r * 2048))
    a("s_waitcnt lgkmcnt(0)")
    a("s_barrier")

    NK = 11
    def acc(t, n):
        return 144 + (t * 8 + n) * 4
    for k in range(NK):
        slot = k % 4
        a.c("substep %d" % k)
        a("s_waitcnt vmcnt(%d)" % (12 * (min(k + 3, NK - 1) - k)))
        if k in (0, 1, 2, 4, 7, 10): stamp(a)
        a("ds_read_b128 v[20:23], v19 offset:%d" % (k * 512))
        a("ds_read_b128 v[24:27], v19 offset:%d" % (6144 + k * 512))
        for n in range(4):
            for h in range(2):
                a("ds_read_b64_tr_b16 v[%d:%d], v%d offset:%d" % (48 + n * 4 + 2 * h, 48 + n * 4 + 2 * h + 1, 8 + n, slot * 8192 + h * 1024))
        a("s_waitcnt lgkmcnt(8)")
        for i in range(4):
            q = 80 + slot * 16 + i * 4
            t = 28 + (i % 2) * 4
            p = 36 + (i % 2) * 2
            for e in range(4):
                a("v_fma_mix_f32 v%d, v%d, v%d, v%d op_sel_hi:[1,0,0]" % (t + e, q + e, 20 + e, 24 + e))
            a("v_cvt_pk_bf16_f32 v%d, v%d, v%d" % (p, t, t + 1))
            a("v_cvt_pk_bf16_f32 v%d, v%d, v%d" % (p + 1, t + 2, t + 3))
            a("ds_write_b64 v%d, v[%d:%d] offset:%d" % (16 + (i & 1), p, p + 1, (i >> 1) * 1024))
        if k + 4 < NK:
            issue_q(k + 4)
        a("ds_read_b128 v[40:43], v18")
        a("ds_read_b128 v[44:47], v18 offset:1024")
        for n in range(4, 8):
            for h in range(2):
                a("ds_read_b64_tr_b16 v[%d:%d], v%d offset:%d" % (48 + n * 4 + 2 * h, 48 + n * 4 + 2 * h + 1, 8 + n, slot * 8192 + h * 1024))
        a("s_waitcnt lgkmcnt(8)")
        for n in range(4):
            for t in range(2):
                c = "0" if k == 0 else vr(acc(t, n))
                a("%s %s, %s, %s, %s" % (MFMA, vr(acc(t, n)), vr(40 + 4 * t), vr(48 + 4 * n), c))
        a("s_waitcnt lgkmcnt(0)")
        if k + 4 < NK:
            issue_v(k + 4)
        for n in range(4, 8):
            for t in range(2):
                c = "0" if k == 0 else vr(acc(t, n))
                a("%s %s, %s, %s, %s" % (MFMA, vr(acc(t, n)), vr(40 + 4 * t), vr(48 + 4 * n), c))
    stamp(a)
    a("s_lshl_b32 s13, s3, 12")
    a("v_lshlrev_b32 v2, 4, v1")
    a("v_add_u32 v3, s13, v2")
    a("s_lshl_b32 s13, s3, 14")
    a("v_add_u32 v4, s13, v2")
    a("v_lshrrev_b32 v30, 4, v1")
    a("v_bfe_u32 v5, v1, 2, 1")
    a("v_lshlrev_b32 v5, 14, v5")
    a("v_lshl_add_u32 v5, v30, 8, v5")
    a("v_bfe_u32 v6, v1, 3, 1")
    a("v_lshl_add_u32 v5, v6, 6, v5")
    a("v_and_b32 v6, 3, v1")
    a("v_lshl_add_u32 v5, v6, 4, v5")
    a("s_lshl_b32 s13, s7, 2")
    a("s_add_u32 s13, s13, s3")
    a("s_lshl_b32 s13, s13, 15")
    a("s_lshl_b32 s14, s6, 10")
    a("s_add_u32 s13, s13, s14")
    a("s_barrier")
    for wd in range(4):
        for nl in range(2):
            for t in range(2):
                a("ds_write_b128 v3, %s offset:%d" % (vr(acc(t, 2 * wd + nl)), wd * 16384 + (2 * nl + t) * 1024))
    a("s_waitcnt lgkmcnt(0)")
    a("s_barrier")
    for src in range(4):
        for idx in range(4):
            a("ds_read_b128 %s, v4 offset:%d" % (vr(48 + (src * 4 + idx) * 4), src * 4096 + idx * 1024))
    a("s_waitcnt lgkmcnt(8)")
    for j in range(16):
        a("v_add_f32 v%d, v%d, v%d" % (48 + j, 48 + j, 64 + j))
    a("s_waitcnt lgkmcnt(0)")
    for j in range(16):
        a("v_add_f32 v%d, v%d, v%d" % (80 + j, 80 + j, 96 + j))
    for j in range(16):
        a("v_add_f32 v%d, v%d, v%d" % (48 + j, 48 + j, 80 + j))
    for nl in range(2):
        b = 48 + nl * 8
        d = 112 + nl * 4
        for j in range(4):
            a("v_cvt_pk_bf16_f32 v%d, v%d, v%d" % (d + j, b + 2 * j, b + 2 * j + 1))
        a("buffer_store_dwordx4 %s, v5, s[%d:%d], s13 offen offset:%d" % (vr(d), SP, SP + 3, nl * 128))
    stamp(a)
    if PROF: a("s_waitcnt vmcnt(0)")
    stamp(a); stamp(a, True)
    stamp_flush(a, 0)
    a("s_endpgm")

def gen_1a(a):
    SX, SU, SO = 36, 40, 44
    a.c("==== 1a: xr tile (128 s x 128 e) ====")
    nst[0] = 2
    a("s_sub_u32 s5, s5, 22")
    a("s_and_b32 s6, s5, 1")
    a("s_lshl_b32 s7, s4, 1")
    a("s_add_u32 s6, s6, s7")
    a("s_lshr_b32 s7, s5, 1")
    a("v_lshrrev_b32 v28, 3, v1")
    a("v_and_b32 v29, 7, v1")
    a("v_lshrrev_b32 v30, 4, v1")
    a("v_and_b32 v31, 15, v1")
    a("s_lshl_b32 s8, s6, 7")
    a("s_lshl_b32 s9, s3, 5")
    a("s_add_u32 s8, s8, s9")
    a("v_add_u32 v33, s8, v28")
    a("v_lshlrev_b32 v33, 10, v33")
    a("v_xor_b32 v34, v29, v30")
    a("v_lshl_add_u32 v2, v34, 4, v33")
    a("v_xor_b32 v3, 64, v2")
    a("v_lshrrev_b32 v33, 1, v31")
    a("v_xor_b32 v33, v33, v30")
    a("v_and_b32 v34, 1, v1")
    a("v_lshl_or_b32 v35, v33, 1, v34")
    a("v_lshlrev_b32 v35, 4, v35")
    a("v_lshl_add_u32 v35, v30, 10, v35")
    a("s_lshl_b32 s8, s7, 8")
    a("v_add_u32 v4, s8, v35")
    a("v_xor_b32 v5, 128, v4")
    a("s_waitcnt lgkmcnt(0)")
    srd(a, SX, 16, 17, 2048 * 1024)
    srd(a, SU, 24, 25, 512 * 1024)
    srd_off(a, SO, 32, 33, XR_OFF, XR_SIZE)
    a("s_lshl_b32 s56, s3, 12")
    a("s_lshl_b32 s57, s3, 14")
    def issue(kk):
        slot = kk % 4
        a("s_add_u32 m0, s56, %d" % (slot * 32768))
        for b in range(4):
            a("s_mov_b32 s58, %d" % (128 * kk + 7168 * b))
            a("buffer_load_dwordx4 v%d, s[%d:%d], s58 offen offset:%d lds" % (2 + (b & 1), SX, SX + 3, b * 1024))
        a("s_add_u32 m0, s56, %d" % (slot * 32768 + 16384))
        for b in range(4):
            a("s_add_u32 s58, s57, %d" % (64 * kk * 1024 + 4 * b * 1024 - b * 1024))
            a("buffer_load_dwordx4 v%d, s[%d:%d], s58 offen offset:%d lds" % (4 + ((b >> 1) & 1), SU, SU + 3, b * 1024))
    for kk in range(3):
        issue(kk)
    a("s_and_b32 s10, s3, 1")
    a("s_lshr_b32 s11, s3, 1")
    a("s_lshl_b32 s12, s11, 13")
    a("v_lshrrev_b32 v33, 1, v31")
    a("v_xor_b32 v33, v33, v30")
    a("v_lshlrev_b32 v33, 4, v33")
    a("v_lshl_add_u32 v33, v31, 7, v33")
    a("v_add_u32 v6, s12, v33")
    a("v_xor_b32 v7, 64, v6")
    a("v_add_u32 v8, 0x10000, v6")
    a("v_add_u32 v9, 0x10000, v7")
    a("v_bfe_u32 v33, v1, 2, 2")
    a("v_and_b32 v34, 3, v1")
    a("v_lshl_add_u32 v35, v30, 3, v33")
    a("v_lshlrev_b32 v35, 8, v35")
    a("v_and_b32 v36, 1, v30")
    a("v_lshl_add_u32 v36, v36, 2, v33")
    a("v_lshl_add_u32 v35, v36, 5, v35")
    a("v_lshl_add_u32 v35, v34, 3, v35")
    a("s_lshl_b32 s12, s10, 7")
    a("v_xor_b32 v35, s12, v35")
    a("v_add_u32 v10, 16384, v35")
    for te in range(1, 4):
        a("v_xor_b32 v%d, %d, v10" % (10 + te, te * 32))
    for te in range(4):
        a("v_add_u32 v%d, 0x10000, v%d" % (14 + te, 10 + te))
    def acc(te, ts):
        return 144 + (te * 4 + ts) * 4
    for kk in range(8):
        slot = kk % 4
        hi = slot // 2
        so = (slot % 2) * 32768
        a.c("1a step %d" % kk)
        a("s_waitcnt vmcnt(%d)" % (8 * (min(kk + 2, 7) - kk)))
        a("s_barrier")
        stamp(a)
        if kk + 3 < 8:
            issue(kk + 3)
        for hh in range(2):
            for te in range(4):
                for h in range(2):
                    r = 32 + hh * 16 + te * 4 + 2 * h
                    a("ds_read_b64_tr_b16 v[%d:%d], v%d offset:%d" % (r, r + 1, 10 + 4 * hi + te, so + hh * 8192 + h * 1024))
            for ts in range(4):
                a("ds_read_b128 %s, v%d offset:%d" % (vr(64 + hh * 16 + ts * 4), 6 + 2 * hi + hh, so + ts * 2048))
            if hh == 0:
                pass
        a("s_waitcnt lgkmcnt(12)")
        for hh in range(2):
            if hh == 1:
                a("s_waitcnt lgkmcnt(0)")
            for te in range(4):
                for ts in range(4):
                    c = "0" if (kk == 0 and hh == 0) else vr(acc(te, ts))
                    a("%s %s, %s, %s, %s" % (MFMA, vr(acc(te, ts)), vr(32 + hh * 16 + te * 4), vr(64 + hh * 16 + ts * 4), c))
    a("v_lshlrev_b32 v2, 4, v1")
    a("s_lshl_b32 s12, s6, 3")
    a("s_lshl_b32 s13, s11, 2")
    a("s_add_u32 s12, s12, s13")
    a("s_lshl_b32 s12, s12, 4")
    a("s_lshl_b32 s13, s7, 2")
    a("s_add_u32 s12, s12, s13")
    a("s_lshl_b32 s13, s10, 1")
    a("s_add_u32 s12, s12, s13")
    a("s_lshl_b32 s12, s12, 10")
    a("s_nop 7")
    n = 0
    for ts in range(4):
        a("s_add_u32 s13, s12, %d" % (ts * 16384))
        for m in range(2):
            d = 32 + (n % 4) * 4
            n += 1
            a0 = acc(2 * m, ts); a1 = acc(2 * m + 1, ts)
            a("v_cvt_pk_bf16_f32 v%d, v%d, v%d" % (d, a0, a0 + 1))
            a("v_cvt_pk_bf16_f32 v%d, v%d, v%d" % (d + 1, a0 + 2, a0 + 3))
            a("v_cvt_pk_bf16_f32 v%d, v%d, v%d" % (d + 2, a1, a1 + 1))
            a("v_cvt_pk_bf16_f32 v%d, v%d, v%d" % (d + 3, a1 + 2, a1 + 3))
            a("buffer_store_dwordx4 %s, v2, s[%d:%d], s13 offen offset:%d" % (vr(d), SO, SO + 3, m * 1024))
    stamp(a)
    if PROF: a("s_waitcnt vmcnt(0)")
    stamp(a); stamp(a, True)
    stamp_flush(a, 0)
    a("s_endpgm")

K2_STG = 98304
K2_RS = 208
K2_LDS = K2_STG + 4 * 32 * K2_RS

def gen_k2(a):
    SX, SP, SO = 36, 40, 44
    a.lab(K2)
    a("s_cmp_ge_u32 s2, 256")
    a("s_cbranch_scc1 K2_done")
    a("s_load_dwordx2 s[28:29], s[0:1], 48")
    a("s_load_dwordx2 s[32:33], s[0:1], 64")
    stamp(a, True); stamp(a)
    a("v_and_b32 v1, 63, v0")
    a("v_lshrrev_b32 v2, 6, v0")
    a("s_and_b32 s4, s2, 7")
    a("v_readfirstlane_b32 s3, v2")
    a("s_lshr_b32 s5, s2, 3")
    a("s_and_b32 s6, s4, 3")
    a("s_lshl_b32 s6, s6, 2")
    a("s_and_b32 s7, s5, 3")
    a("s_add_u32 s6, s6, s7")
    a("s_lshr_b32 s7, s4, 2")
    a("s_lshl_b32 s7, s7, 3")
    a("s_lshr_b32 s8, s5, 2")
    a("s_add_u32 s7, s7, s8")
    a("s_cmp_ge_u32 s7, 15")
    a("s_cbranch_scc1 K2_done")
    a("v_lshlrev_b32 v2, 4, v1")
    a("s_lshl_b32 s9, s6, 3")
    a("s_lshl_b32 s10, s3, 1")
    a("s_add_u32 s9, s9, s10")
    a("s_lshl_b32 s9, s9, 14")
    a("s_lshr_b32 s10, s3, 1")
    a("s_and_b32 s11, s3, 1")
    a("s_mul_i32 s12, s7, 6")
    a("s_mul_i32 s13, s11, 3")
    a("s_add_u32 s12, s12, s13")
    a("s_lshl_b32 s12, s12, 4")
    a("s_add_u32 s12, s12, s10")
    a("s_lshl_b32 s12, s12, 10")
    a("s_mul_i32 s14, s10, 6")
    a("s_add_u32 s14, s14, s13")
    a("s_lshl_b32 s14, s14, 10")
    a("s_waitcnt lgkmcnt(0)")
    srd_off(a, SX, 32, 33, XR_OFF, XR_SIZE)
    srd_off(a, SP, 32, 33, PT_OFF, PT_SIZE)
    srd(a, SO, 28, 29, 2048 * 2752)
    def X(ts, T):
        return 64 + (ts * 16 + T) * 4
    NC = 8
    for c in range(NC):
        a("s_add_u32 m0, s14, %d" % (c * 2 * 6144))
        for i in range(3):
            a("s_add_u32 s58, s12, %d" % (c * 2 * 1024 + i * 16384 - i * 1024 + 0))
            a("buffer_load_dwordx4 v2, s[%d:%d], s58 offen offset:%d lds" % (SP, SP + 3, i * 1024))
        for ts in range(2):
            a("s_add_u32 s58, s9, %d" % (ts * 16384 + c * 2048))
            for tt in range(2):
                a("buffer_load_dwordx4 %s, v2, s[%d:%d], s58 offen offset:%d" % (vr(X(ts, 2 * c + tt)), SX, SX + 3, tt * 1024))
    a("s_mul_i32 s15, s3, %d" % (32 * K2_RS))
    a("s_add_u32 s15, s15, %d" % K2_STG)
    a("v_and_b32 v3, 15, v1")
    a("v_lshrrev_b32 v4, 4, v1")
    a("v_mul_u32_u24 v5, %d, v3" % K2_RS)
    a("v_lshl_add_u32 v5, v4, 4, v5")
    a("v_add_u32 v3, s15, v5")
    a("s_lshl_b32 s16, s6, 7")
    a("s_lshl_b32 s17, s3, 5")
    a("s_add_u32 s16, s16, s17")
    a("s_mul_i32 s16, s16, 2752")
    a("s_mul_i32 s17, s7, 192")
    a("s_movk_i32 s18, 2752")
    for n in range(6):
        a("v_add_u32 v12, %d, v1" % (64 * n))
        a("v_mul_u32_u24 v13, 0xAAAB, v12")
        a("v_lshrrev_b32 v13, 19, v13")
        a("v_mul_u32_u24 v14, 12, v13")
        a("v_sub_u32 v14, v12, v14")
        a("v_mul_u32_u24 v15, %d, v13" % K2_RS)
        a("v_lshl_add_u32 v15, v14, 4, v15")
        a("v_add_u32 v%d, s15, v15" % (240 + n))
        a("v_lshl_add_u32 v14, v14, 4, s17")
        a("v_mul_u32_u24 v15, 2752, v13")
        a("v_add3_u32 v15, v15, v14, s16")
        a("v_cmp_gt_u32 vcc, s18, v14")
        a("v_mov_b32 v13, 0x7fffffff")
        a("s_nop 0")
        a("v_cndmask_b32 v%d, v13, v15, vcc" % (246 + n))
    stamp(a)
    def acc(ts, g):
        return 192 + (ts * 6 + g) * 4
    def AF(buf, g):
        return 16 + buf * 24 + g * 4
    for c in range(NC):
        a.c("chunk %d" % c)
        a("s_waitcnt vmcnt(%d)" % (7 * (NC - 1 - c)))
        a("s_barrier")
        stamp(a)
        for tt in range(2):
            T = 2 * c + tt
            for g in range(6):
                off = (T * 6 + g) * 1024
                if off < 65536:
                    a("ds_read_b128 %s, v2 offset:%d" % (vr(AF(tt, g)), off))
                else:
                    a("ds_read_b128 %s, v10 offset:%d" % (vr(AF(tt, g)), off - 65536))
            if c == 0 and tt == 0:
                a("v_add_u32 v10, 0x10000, v2")
        for tt in range(2):
            T = 2 * c + tt
            a("s_waitcnt lgkmcnt(%d)" % (6 if tt == 0 else 0))
            for g in range(6):
                for ts in range(2):
                    cc = "0" if T == 0 else vr(acc(ts, g))
                    a("%s %s, %s, %s, %s" % (MFMA, vr(acc(ts, g)), vr(AF(tt, g)), vr(X(ts, T)), cc))
    a("s_nop 7")
    for ts in range(2):
        for tp in range(3):
            d = 16 + (ts * 3 + tp) * 4
            a0 = acc(ts, 2 * tp); a1 = acc(ts, 2 * tp + 1)
            a("v_cvt_pk_bf16_f32 v%d, v%d, v%d" % (d, a0, a0 + 1))
            a("v_cvt_pk_bf16_f32 v%d, v%d, v%d" % (d + 1, a0 + 2, a0 + 3))
            a("v_cvt_pk_bf16_f32 v%d, v%d, v%d" % (d + 2, a1, a1 + 1))
            a("v_cvt_pk_bf16_f32 v%d, v%d, v%d" % (d + 3, a1 + 2, a1 + 3))
            a("ds_write_b128 v3, %s offset:%d" % (vr(d), ts * 16 * K2_RS + tp * 64))
    for n in range(6):
        a("ds_read_b128 %s, v%d" % (vr(40 + n * 4), 240 + n))
    for n in range(6):
        a("s_waitcnt lgkmcnt(%d)" % (5 - n))
        a("buffer_store_dwordx4 %s, v%d, s[%d:%d], 0 offen" % (vr(40 + n * 4), 246 + n, SO, SO + 3))
    stamp(a)
    if PROF: a("s_waitcnt vmcnt(0)")
    stamp(a); stamp(a, True)
    stamp_flush(a, 1)
    a.lab("K2_done")
    a("s_endpgm")

HDR = open("cdna_kernels/%s.s.ref" % NAME).read().split("; Override launch")[0]

def kd(name, lds=0, vgpr=256, sgpr=102):
    return """.amdhsa_kernel %s
  .amdhsa_next_free_vgpr %d
  .amdhsa_next_free_sgpr %d
  .amdhsa_accum_offset %d
  .amdhsa_group_segment_fixed_size 0
  .amdhsa_kernarg_size 72
  .amdhsa_user_sgpr_count 2
  .amdhsa_user_sgpr_kernarg_segment_ptr 1
  .amdhsa_system_sgpr_workgroup_id_x 1
  .amdhsa_float_denorm_mode_32 3
  .amdhsa_float_denorm_mode_16_64 3
.end_amdhsa_kernel
""" % (name, vgpr, sgpr, min(256, (vgpr + 3) // 4 * 4))

def main(out):
    a = A()
    s = HDR
    s += "; @launch kernel=%s grid=(256,1,1) block=(256,1,1) lds=%d\n" % (K1, K1_LDS)
    s += "; @launch kernel=%s grid=(256,1,1) block=(256,1,1) lds=%d\n" % (K2, K2_LDS)
    s += '.amdgcn_target "amdgcn-amd-amdhsa--gfx950"\n.text\n'
    s += ".globl %s\n.p2align 8\n.type %s,@function\n" % (K1, K1)
    gen_k1(a)
    s += a.text()
    a = A()
    s += ".globl %s\n.p2align 8\n.type %s,@function\n" % (K2, K2)
    gen_k2(a)
    s += a.text()
    s += '.section .rodata,"a"\n.p2align 6\n'
    s += kd(K1) + ".p2align 6\n" + kd(K2)
    open(out, "w").write(s)

if __name__ == "__main__":
    if len(sys.argv) > 2 and sys.argv[2] == "prof": PROF = True
    main(sys.argv[1] if len(sys.argv) > 1 else "cdna_kernels/%s.s" % NAME)
```

```python
import sys

NAME = "standalone__weight_only_int_quip__prompt"
K1 = NAME + "_kernel"
K2 = "quip_k2_kernel"

XR_OFF = 0
XR_SIZE = 2048 * 512 * 2
PT_OFF = XR_SIZE
PT_SIZE = 86 * 16 * 1024

class A:
    def __init__(self):
        self.l = []
    def __call__(self, s):
        self.l.append("    " + s)
    def lab(self, s):
        self.l.append(s + ":")
    def c(self, s):
        self.l.append("    ; " + s)
    def text(self):
        return "\n".join(self.l) + "\n"

def vr(b, n=4):
    return "v[%d:%d]" % (b, b + n - 1)
def sr(b, n=4):
    return "s[%d:%d]" % (b, b + n - 1)

def srd(a, d, lo, hi, size):
    a("s_mov_b32 s%d, s%d" % (d, lo))
    a("s_and_b32 s%d, s%d, 0xffff" % (d + 1, hi))
    a("s_mov_b32 s%d, 0x%x" % (d + 2, size))
    a("s_mov_b32 s%d, 0x20000" % (d + 3))

def srd_off(a, d, lo, hi, off, size):
    a("s_add_u32 s%d, s%d, 0x%x" % (d, lo, off))
    a("s_addc_u32 s%d, s%d, 0" % (d + 1, hi))
    a("s_and_b32 s%d, s%d, 0xffff" % (d + 1, d + 1))
    a("s_mov_b32 s%d, 0x%x" % (d + 2, size))
    a("s_mov_b32 s%d, 0x20000" % (d + 3))

MFMA = "v_mfma_f32_16x16x32_bf16"

class VM:
    def __init__(self, a):
        self.a = a; self.ops = []
    def issue(self, tag):
        self.ops.append(tag)
    def wait(self, tag):
        idx = max(i for i, t in enumerate(self.ops) if t == tag)
        n = len(self.ops) - 1 - idx
        assert n <= 63, n
        self.a("s_waitcnt vmcnt(%d)" % n)

def weave(a, prim, fill, vm=None):
    n = len(prim); m = len(fill)
    k = 0
    for i, p in enumerate(prim):
        a(p)
        want = (i + 1) * m // n if n else m
        while k < want:
            emit_group(a, fill[k], vm); k += 1
    while k < m:
        emit_group(a, fill[k], vm); k += 1

def emit_group(a, g, vm):
    for x in g:
        if isinstance(x, tuple):
            a(x[2]); vm.issue(x[1])
        else:
            a(x)
PROF = False
ROT = 2
ROTA = True
STAMP_OFF = 32 << 20
nst = [0]
def stamp(a, real=False):
    if not PROF: return
    i = nst[0]; nst[0] += 1
    assert i < 16
    a("%s s[%d:%d]" % ("s_memrealtime" if real else "s_memtime", 64 + 2 * i, 65 + 2 * i))
def stamp_flush(a, kidx):
    if not PROF: return
    a("s_waitcnt lgkmcnt(0)")
    for i in range(nst[0]):
        a("v_writelane_b32 v255, s%d, %d" % (64 + 2 * i, i))
    a("s_load_dwordx2 s[96:97], s[0:1], 64")
    a("s_waitcnt lgkmcnt(0)")
    a("s_add_u32 s96, s96, 0x%x" % STAMP_OFF)
    a("s_addc_u32 s97, s97, 0")
    a("s_and_b32 s97, s97, 0xffff")
    a("s_mov_b32 s98, 0x100000")
    a("s_mov_b32 s99, 0x20000")
    a("s_lshl_b32 s100, s2, 2")
    a("s_add_u32 s100, s100, s3")
    a("s_add_u32 s100, s100, %d" % (kidx * 1024))
    a("s_lshl_b32 s100, s100, 6")
    a("v_lshlrev_b32 v254, 2, v1")
    a("v_cmp_gt_u32 vcc, 16, v1")
    a("s_and_saveexec_b64 s[62:63], vcc")
    a("buffer_store_dword v255, v254, s[96:99], s100 offen")
    a("s_mov_b64 exec, s[62:63]")
    nst[0] = 0

LDS_A = 131072
LDS_S = 139264
LDS_Z = LDS_S + 6144
K1_LDS = LDS_Z + 6144

def gen_k1(a):
    a.lab(K1)
    a("s_cmp_ge_u32 s2, 256")
    a("s_cbranch_scc1 K1_done")
    a("s_load_dwordx16 s[16:31], s[0:1], 0")
    a("s_load_dwordx2 s[32:33], s[0:1], 64")
    stamp(a, True); stamp(a)
    a("v_and_b32 v1, 63, v0")
    a("v_lshrrev_b32 v2, 6, v0")
    a("s_and_b32 s4, s2, 7")
    a("v_readfirstlane_b32 s3, v2")
    a("s_lshr_b32 s5, s2, 3")
    a("s_cmp_ge_u32 s5, 30")
    a("s_cbranch_scc1 K1_done")
    a("s_cmp_ge_u32 s5, 22")
    a("s_cbranch_scc1 K1_a")
    gen_1b(a)
    a.lab("K1_a")
    gen_1a(a)
    a.lab("K1_done")
    a("s_endpgm")

def gen_1b(a):
    SQ, SV, SS, SZ, SP = 36, 40, 44, 48, 52
    a.c("==== 1b: P^T tile (32 e x 128 g) ====")
    a("s_lshr_b32 s6, s4, 1")
    a("s_mul_i32 s6, s6, 22")
    a("s_add_u32 s6, s6, s5")
    a("s_lshr_b32 s7, s6, 3")
    a("s_and_b32 s6, s6, 7")
    a("s_and_b32 s8, s4, 1")
    a("s_lshl_b32 s8, s8, 3")
    a("s_add_u32 s6, s6, s8")
    a("v_lshrrev_b32 v28, 3, v1")
    a("v_and_b32 v29, 7, v1")
    a("v_lshrrev_b32 v30, 4, v1")
    a("v_and_b32 v31, 15, v1")
    a("s_lshr_b32 s9, s6, 2")
    a("s_mul_i32 s9, s9, 2752")
    a("v_lshlrev_b32 v32, 2, v0")
    a("v_add_u32 v32, s9, v32")
    a("s_lshl_b32 s10, s6, 5")
    a("v_add_u32 v33, s10, v28")
    a("s_movk_i32 s11, 5504")
    a("v_mul_lo_u32 v33, v33, s11")
    a("v_lshl_add_u32 v2, v29, 4, v33")
    a("v_add_u32 v3, %d, v2" % (8 * 5504))
    a("v_add_u32 v4, %d, v2" % (16 * 5504))
    a("v_add_u32 v5, %d, v2" % (24 * 5504))
    a("v_lshrrev_b32 v33, 1, v31")
    a("v_xor_b32 v33, v33, v30")
    a("v_and_b32 v34, 1, v1")
    a("v_lshl_or_b32 v35, v33, 1, v34")
    a("v_lshlrev_b32 v35, 4, v35")
    a("v_mul_u32_u24 v36, 2752, v30")
    a("s_lshl_b32 s12, s7, 8")
    a("v_add3_u32 v6, v35, v36, s12")
    a("v_xor_b32 v35, 128, v35")
    a("v_add3_u32 v7, v35, v36, s12")
    a("s_waitcnt lgkmcnt(0)")
    srd(a, SQ, 18, 19, 512 * 5504)
    srd(a, SV, 26, 27, 1376 * 2752)
    srd(a, SS, 20, 21, 4 * 2752)
    srd(a, SZ, 22, 23, 4 * 2752)
    srd_off(a, SP, 32, 33, PT_OFF, PT_SIZE)
    for r in range(3):
        a("buffer_load_dword v%d, v32, s[%d:%d], 0 offen offset:%d" % (40 + r, SS, SS + 3, 1024 * r))
    for r in range(3):
        a("buffer_load_dword v%d, v32, s[%d:%d], 0 offen offset:%d" % (43 + r, SZ, SZ + 3, 1024 * r))
    a("s_lshl_b32 s56, s3, 7")
    a("s_mul_i32 s57, s3, 88064")
    a("s_lshl_b32 s59, s3, 15")

    a("s_add_u32 s61, s6, s7")
    if ROT == 11:
        a("s_cmp_ge_u32 s61, 22")
        a("s_cselect_b32 s60, 22, 0")
        a("s_sub_u32 s61, s61, s60")
        a("s_cmp_ge_u32 s61, 11")
        a("s_cselect_b32 s60, 11, 0")
        a("s_sub_u32 s61, s61, s60")
    elif ROT == 2:
        a("s_and_b32 s61, s61, 1")
        a("s_mul_i32 s61, s61, 5")
    elif ROT == 4:
        a("s_and_b32 s61, s61, 3")
        a("s_mul_i32 s61, s61, 3")
    elif ROT == 3:
        a("s_mul_i32 s60, s61, 11")
        a("s_lshr_b32 s60, s60, 5")
        a("s_mul_i32 s60, s60, 3")
        a("s_sub_u32 s61, s61, s60")
        a("s_mul_i32 s61, s61, 4")
    else:
        a("s_mov_b32 s61, 0")
    a("s_lshl_b32 s61, s61, 9")
    a("s_mov_b32 s60, s61")
    vm = VM(a)
    for r in range(6): vm.issue("tab")
    def adv(r):
        return ["s_add_u32 s%d, s%d, 512" % (r, r), "s_cmp_eq_u32 s%d, 5632" % r, "s_cselect_b32 s%d, 0, s%d" % (r, r)]
    QB = 80
    def grp(k):
        slot = k % 4
        L = []
        for i in range(4):
            g = []
            if i == 0: g.append("s_add_u32 s58, s56, s61")
            g.append(("vm", k, "buffer_load_dwordx4 %s, v%d, s[%d:%d], s58 offen" % (vr(QB + slot * 16 + i * 4), 2 + i, SQ, SQ + 3)))
            L.append(g)
        for b in range(8):
            g = []
            if b == 0:
                g += ["s_mul_i32 s62, s61, 688", "s_add_u32 s62, s62, s57"]
            if b % 4 == 0:
                g.append("s_add_u32 m0, s59, %d" % (slot * 8192 + (b // 4) * 4096))
            g.append("s_add_u32 s58, s62, %d" % (4 * b * 2752 - (b % 4) * 1024))
            g.append(("vm", k, "buffer_load_dwordx4 v%d, s[%d:%d], s58 offen offset:%d lds" % (6 + ((b >> 1) & 1), SV, SV + 3, (b % 4) * 1024)))
            if b == 7: g += adv(61)
            L.append(g)
        return L
    for k in range(2):
        for g in grp(k): emit_group(a, g, vm)
    a("v_bfe_u32 v33, v1, 2, 2")
    a("v_and_b32 v34, 3, v1")
    a("v_lshl_add_u32 v35, v30, 3, v33")
    a("v_lshlrev_b32 v35, 8, v35")
    a("v_and_b32 v36, 1, v30")
    a("v_lshl_add_u32 v36, v36, 2, v33")
    a("v_lshl_add_u32 v35, v36, 5, v35")
    a("v_lshl_add_u32 v35, v34, 3, v35")
    a("v_add_u32 v8, s59, v35")
    for n in range(1, 8):
        a("v_xor_b32 v%d, %d, v8" % (8 + n, n * 32))
    a("s_lshl_b32 s13, s3, 11")
    a("s_add_u32 s13, s13, %d" % LDS_A)
    a("v_lshrrev_b32 v33, 5, v1")
    a("v_lshrrev_b32 v34, 1, v29")
    a("v_and_b32 v35, 1, v29")
    a("v_lshlrev_b32 v35, 3, v35")
    a("v_lshl_add_u32 v35, v28, 6, v35")
    a("v_add_u32 v35, s13, v35")
    for x in range(2):
        a("v_add_u32 v36, %d, v33" % (2 * x))
        a("v_sub_u32 v36, 0, v36")
        a("v_and_b32 v36, 3, v36")
        a("v_xor_b32 v36, v36, v34")
        a("v_lshl_add_u32 v36, v36, 4, v35")
        a("v_add_u32 v%d, %d, v36" % (16 + x, 512 * x))
    a("v_lshrrev_b32 v33, 2, v31")
    a("v_sub_u32 v33, 0, v33")
    a("v_and_b32 v33, 3, v33")
    a("v_xor_b32 v33, v33, v30")
    a("v_lshlrev_b32 v33, 4, v33")
    a("v_lshl_add_u32 v33, v31, 6, v33")
    a("v_add_u32 v18, s13, v33")
    a("s_add_u32 s14, s56, %d" % LDS_S)
    a("v_lshl_add_u32 v19, v29, 4, s14")
    a("v_lshlrev_b32 v46, 3, v0")
    a("v_add_u32 v46, %d, v46" % LDS_S)
    a("s_mov_b32 s15, 0x4b800000")
    stamp(a)
    vm.wait("tab")
    stamp(a)
    for r in range(3):
        a("v_lshlrev_b32 v48, 16, v%d" % (40 + r))
        a("v_and_b32 v49, 0xffff0000, v%d" % (40 + r))
        a("v_lshlrev_b32 v50, 16, v%d" % (43 + r))
        a("v_and_b32 v51, 0xffff0000, v%d" % (43 + r))
        a("v_mul_f32 v52, -v50, v48")
        a("v_mul_f32 v53, -v51, v49")
        a("v_mul_f32 v48, s15, v48")
        a("v_mul_f32 v49, s15, v49")
        a("ds_write_b64 v46, v[48:49] offset:%d" % (r * 2048))
        a("ds_write_b64 v46, v[52:53] offset:%d" % (6144 + r * 2048))
    a("s_waitcnt lgkmcnt(0)")
    a("s_barrier")

    NK = 11
    def acc(t, n):
        return (t * 8 + n) * 4
    def ar(b, n=4):
        return "a[%d:%d]" % (b, b + n - 1)
    def AFR(buf): return 40 if buf == 0 else 144
    def BFR(buf): return 48 if buf == 0 else 152
    def prep(k):
        slot = k % 4; buf = k % 2
        L = []
        L.append(["v_add_u32 v208, s60, v19"] + adv(60) + ["ds_read_b128 v[20:23], v208", "ds_read_b128 v[24:27], v208 offset:6144"])
        for n in range(4):
            L.append(["ds_read_b64_tr_b16 v[%d:%d], v%d offset:%d" % (BFR(buf) + n * 4 + 2 * h, BFR(buf) + n * 4 + 2 * h + 1, 8 + n, slot * 8192 + h * 1024) for h in range(2)])
        first = True
        for i in range(4):
            q = QB + slot * 16 + i * 4
            t = 28 + (i % 2) * 4
            p = 36 + (i % 2) * 2
            g = []
            if first: g.append("s_waitcnt lgkmcnt(8)"); first = False
            for e in range(4):
                g.append("v_fma_mix_f32 v%d, v%d, v%d, v%d op_sel_hi:[1,0,0]" % (t + e, q + e, 20 + e, 24 + e))
            L.append(g[:len(g) - 2]); g = g[len(g) - 2:]
            g.append("v_cvt_pk_bf16_f32 v%d, v%d, v%d" % (p, t, t + 1))
            g.append("v_cvt_pk_bf16_f32 v%d, v%d, v%d" % (p + 1, t + 2, t + 3))
            g.append("ds_write_b64 v%d, v[%d:%d] offset:%d" % (16 + (i & 1), p, p + 1, (i >> 1) * 1024))
            L.append(g)
        L.append(["ds_read_b128 %s, v18" % vr(AFR(buf)), "ds_read_b128 %s, v18 offset:1024" % vr(AFR(buf) + 4)])
        for n in range(4, 8):
            L.append(["ds_read_b64_tr_b16 v[%d:%d], v%d offset:%d" % (BFR(buf) + n * 4 + 2 * h, BFR(buf) + n * 4 + 2 * h + 1, 8 + n, slot * 8192 + h * 1024) for h in range(2)])
        return L
    vm.wait(0)
    stamp(a)
    for g in prep(0): emit_group(a, g, vm)
    for g in grp(2): emit_group(a, g, vm)
    issued = 3
    for k in range(NK):
        buf = k % 2
        a.c("substep %d" % k)
        mf = []
        for n in range(8):
            for t in range(2):
                c = "0" if k == 0 else ar(acc(t, n))
                mf.append("%s %s, %s, %s, %s" % (MFMA, ar(acc(t, n)), vr(AFR(buf) + 4 * t), vr(BFR(buf) + 4 * n), c))
        a("s_waitcnt lgkmcnt(0)")
        fill = []
        if k + 1 < NK:
            vm.wait(k + 1)
            if k in (0, 1, 2, 4, 7): stamp(a)
            fill = prep(k + 1)
        vf = []
        tgt = min(k + 4, NK - 1)
        while issued <= tgt:
            vf += grp(issued); issued += 1
        merged = []
        i = j = 0
        while i < len(fill) or j < len(vf):
            if i < len(fill): merged.append(fill[i]); i += 1
            if j < len(vf) and (j * max(1, len(fill)) <= i * len(vf) or i >= len(fill)):
                merged.append(vf[j]); j += 1
        weave(a, mf, merged, vm)
    stamp(a)
    a("s_lshl_b32 s13, s3, 12")
    a("v_lshlrev_b32 v2, 4, v1")
    a("v_add_u32 v3, s13, v2")
    a("s_lshl_b32 s13, s3, 14")
    a("v_add_u32 v4, s13, v2")
    a("v_lshrrev_b32 v30, 4, v1")
    a("v_bfe_u32 v5, v1, 2, 1")
    a("v_lshlrev_b32 v5, 14, v5")
    a("v_lshl_add_u32 v5, v30, 8, v5")
    a("v_bfe_u32 v6, v1, 3, 1")
    a("v_lshl_add_u32 v5, v6, 6, v5")
    a("v_and_b32 v6, 3, v1")
    a("v_lshl_add_u32 v5, v6, 4, v5")
    a("s_lshl_b32 s13, s7, 2")
    a("s_add_u32 s13, s13, s3")
    a("s_lshl_b32 s13, s13, 15")
    a("s_lshl_b32 s14, s6, 10")
    a("s_add_u32 s13, s13, s14")
    for d in range(1, 4):
        a("s_add_u32 s14, s3, %d" % d)
        a("s_and_b32 s14, s14, 3")
        a("s_lshl_b32 s14, s14, 12")
        a("v_add_u32 v%d, s14, v4" % (8 + d))
    a("s_barrier")
    for wd in range(4):
        a("s_cmp_eq_u32 s3, %d" % wd)
        a("s_cbranch_scc1 K1b_own%d" % wd)
        for nl in range(2):
            for t in range(2):
                a("ds_write_b128 v3, %s offset:%d" % (ar(acc(t, 2 * wd + nl)), wd * 16384 + (2 * nl + t) * 1024))
        a("s_branch K1b_next%d" % wd)
        a.lab("K1b_own%d" % wd)
        for nl in range(2):
            for t in range(2):
                for j in range(4):
                    a("v_accvgpr_read_b32 v%d, a%d" % (48 + (2 * nl + t) * 4 + j, acc(t, 2 * wd + nl) + j))
        a.lab("K1b_next%d" % wd)
    a("s_waitcnt lgkmcnt(0)")
    a("s_barrier")
    for d in range(1, 4):
        for idx in range(4):
            a("ds_read_b128 %s, v%d offset:%d" % (vr(48 + (d * 4 + idx) * 4), 8 + d, idx * 1024))
    a("s_waitcnt lgkmcnt(8)")
    for j in range(16):
        a("v_add_f32 v%d, v%d, v%d" % (48 + j, 48 + j, 64 + j))
    a("s_waitcnt lgkmcnt(0)")
    for j in range(16):
        a("v_add_f32 v%d, v%d, v%d" % (80 + j, 80 + j, 96 + j))
    for j in range(16):
        a("v_add_f32 v%d, v%d, v%d" % (48 + j, 48 + j, 80 + j))
    for nl in range(2):
        b = 48 + nl * 8
        d = 112 + nl * 4
        for j in range(4):
            a("v_cvt_pk_bf16_f32 v%d, v%d, v%d" % (d + j, b + 2 * j, b + 2 * j + 1))
        a("buffer_store_dwordx4 %s, v5, s[%d:%d], s13 offen offset:%d" % (vr(d), SP, SP + 3, nl * 128))
    stamp(a)
    if PROF: a("s_waitcnt vmcnt(0)")
    stamp(a); stamp(a, True)
    stamp_flush(a, 0)
    a("s_endpgm")

def gen_1a(a):
    SX, SU, SO = 36, 40, 44
    a.c("==== 1a: xr tile (128 s x 128 e) ====")
    nst[0] = 2
    a("s_sub_u32 s5, s5, 22")
    a("s_and_b32 s6, s5, 1")
    a("s_lshl_b32 s7, s4, 1")
    a("s_add_u32 s6, s6, s7")
    a("s_lshr_b32 s7, s5, 1")
    a("v_lshrrev_b32 v28, 3, v1")
    a("v_and_b32 v29, 7, v1")
    a("v_lshrrev_b32 v30, 4, v1")
    a("v_and_b32 v31, 15, v1")
    a("s_lshl_b32 s8, s6, 7")
    a("s_lshl_b32 s9, s3, 5")
    a("s_add_u32 s8, s8, s9")
    a("v_add_u32 v33, s8, v28")
    a("v_lshlrev_b32 v33, 10, v33")
    a("v_xor_b32 v34, v29, v30")
    a("v_lshl_add_u32 v2, v34, 4, v33")
    a("v_xor_b32 v3, 64, v2")
    a("v_lshrrev_b32 v33, 1, v31")
    a("v_xor_b32 v33, v33, v30")
    a("v_and_b32 v34, 1, v1")
    a("v_lshl_or_b32 v35, v33, 1, v34")
    a("v_lshlrev_b32 v35, 4, v35")
    a("v_lshl_add_u32 v35, v30, 10, v35")
    a("s_lshl_b32 s8, s7, 8")
    a("v_add_u32 v4, s8, v35")
    a("v_xor_b32 v5, 128, v4")
    a("s_waitcnt lgkmcnt(0)")
    srd(a, SX, 16, 17, 2048 * 1024)
    srd(a, SU, 24, 25, 512 * 1024)
    srd_off(a, SO, 32, 33, XR_OFF, XR_SIZE)
    a("s_lshl_b32 s56, s3, 12")
    a("s_lshl_b32 s57, s3, 14")
    a("s_lshl_b32 s61, s7, 1")
    a("s_add_u32 s61, s61, s6")
    a("s_and_b32 s61, s61, 7")
    if not ROTA: a("s_mov_b32 s61, 0")
    def issue_list(kk):
        slot = kk % 4
        L = []
        L.append(["s_lshl_b32 s62, s61, 7",
                  "s_lshl_b32 s63, s61, 16",
                  "s_add_u32 s63, s63, s57",
                  "s_add_u32 m0, s56, %d" % (slot * 32768),
                  "s_mov_b32 s58, s62",
                  "buffer_load_dwordx4 v2, s[%d:%d], s58 offen lds" % (SX, SX + 3)])
        for b in range(1, 4):
            L.append(["s_add_u32 s58, s62, %d" % (7168 * b),
                      "buffer_load_dwordx4 v%d, s[%d:%d], s58 offen offset:%d lds" % (2 + (b & 1), SX, SX + 3, b * 1024)])
        for b in range(4):
            g = []
            if b == 0: g.append("s_add_u32 m0, s56, %d" % (slot * 32768 + 16384))
            g.append("s_add_u32 s58, s63, %d" % (4 * b * 1024 - b * 1024))
            g.append("buffer_load_dwordx4 v%d, s[%d:%d], s58 offen offset:%d lds" % (4 + ((b >> 1) & 1), SU, SU + 3, b * 1024))
            if b == 3: g += ["s_add_u32 s61, s61, 1", "s_and_b32 s61, s61, 7"]
            L.append(g)
        return L
    for kk in range(3):
        for g in issue_list(kk):
            for x in g: a(x)
    a("s_and_b32 s10, s3, 1")
    a("s_lshr_b32 s11, s3, 1")
    a("s_lshl_b32 s12, s11, 13")
    a("v_lshrrev_b32 v33, 1, v31")
    a("v_xor_b32 v33, v33, v30")
    a("v_lshlrev_b32 v33, 4, v33")
    a("v_lshl_add_u32 v33, v31, 7, v33")
    a("v_add_u32 v6, s12, v33")
    a("v_xor_b32 v7, 64, v6")
    a("v_add_u32 v8, 0x10000, v6")
    a("v_add_u32 v9, 0x10000, v7")
    a("v_bfe_u32 v33, v1, 2, 2")
    a("v_and_b32 v34, 3, v1")
    a("v_lshl_add_u32 v35, v30, 3, v33")
    a("v_lshlrev_b32 v35, 8, v35")
    a("v_and_b32 v36, 1, v30")
    a("v_lshl_add_u32 v36, v36, 2, v33")
    a("v_lshl_add_u32 v35, v36, 5, v35")
    a("v_lshl_add_u32 v35, v34, 3, v35")
    a("s_lshl_b32 s12, s10, 7")
    a("v_xor_b32 v35, s12, v35")
    a("v_add_u32 v10, 16384, v35")
    for te in range(1, 4):
        a("v_xor_b32 v%d, %d, v10" % (10 + te, te * 32))
    for te in range(4):
        a("v_add_u32 v%d, 0x10000, v%d" % (14 + te, 10 + te))
    def acc(te, ts):
        return 144 + (te * 4 + ts) * 4
    for kk in range(8):
        slot = kk % 4
        hi = slot // 2
        so = (slot % 2) * 32768
        a.c("1a step %d" % kk)
        a("s_waitcnt vmcnt(%d)" % (8 * (min(kk + 2, 7) - kk)))
        a("s_barrier")
        stamp(a)
        pend = issue_list(kk + 3) if kk + 3 < 8 else []
        for hh in range(2):
            for te in range(4):
                for h in range(2):
                    r = 32 + hh * 16 + te * 4 + 2 * h
                    a("ds_read_b64_tr_b16 v[%d:%d], v%d offset:%d" % (r, r + 1, 10 + 4 * hi + te, so + hh * 8192 + h * 1024))
            for ts in range(4):
                a("ds_read_b128 %s, v%d offset:%d" % (vr(64 + hh * 16 + ts * 4), 6 + 2 * hi + hh, so + ts * 2048))
        a("s_waitcnt lgkmcnt(12)")
        cnt = 0
        for hh in range(2):
            if hh == 1:
                a("s_waitcnt lgkmcnt(0)")
            for te in range(4):
                for ts in range(4):
                    c = "0" if (kk == 0 and hh == 0) else vr(acc(te, ts))
                    a("%s %s, %s, %s, %s" % (MFMA, vr(acc(te, ts)), vr(32 + hh * 16 + te * 4), vr(64 + hh * 16 + ts * 4), c))
                    cnt += 1
                    if cnt % 3 == 0 and pend:
                        for x in pend.pop(0): a(x)
        assert not pend
    a("v_lshlrev_b32 v2, 4, v1")
    a("s_lshl_b32 s12, s6, 3")
    a("s_lshl_b32 s13, s11, 2")
    a("s_add_u32 s12, s12, s13")
    a("s_lshl_b32 s12, s12, 4")
    a("s_lshl_b32 s13, s7, 2")
    a("s_add_u32 s12, s12, s13")
    a("s_lshl_b32 s13, s10, 1")
    a("s_add_u32 s12, s12, s13")
    a("s_lshl_b32 s12, s12, 10")
    a("s_nop 7")
    n = 0
    for ts in range(4):
        a("s_add_u32 s13, s12, %d" % (ts * 16384))
        for m in range(2):
            d = 32 + (n % 4) * 4
            n += 1
            a0 = acc(2 * m, ts); a1 = acc(2 * m + 1, ts)
            a("v_cvt_pk_bf16_f32 v%d, v%d, v%d" % (d, a0, a0 + 1))
            a("v_cvt_pk_bf16_f32 v%d, v%d, v%d" % (d + 1, a0 + 2, a0 + 3))
            a("v_cvt_pk_bf16_f32 v%d, v%d, v%d" % (d + 2, a1, a1 + 1))
            a("v_cvt_pk_bf16_f32 v%d, v%d, v%d" % (d + 3, a1 + 2, a1 + 3))
            a("buffer_store_dwordx4 %s, v2, s[%d:%d], s13 offen offset:%d" % (vr(d), SO, SO + 3, m * 1024))
    stamp(a)
    if PROF: a("s_waitcnt vmcnt(0)")
    stamp(a); stamp(a, True)
    stamp_flush(a, 0)
    a("s_endpgm")

K2_STG = 98304
K2_RS = 208
K2_LDS = K2_STG + 4 * 32 * K2_RS

def gen_k2(a):
    SX, SP, SO = 36, 40, 44
    a.lab(K2)
    a("s_cmp_ge_u32 s2, 256")
    a("s_cbranch_scc1 K2_done")
    a("s_load_dwordx2 s[28:29], s[0:1], 48")
    a("s_load_dwordx2 s[32:33], s[0:1], 64")
    stamp(a, True); stamp(a)
    a("v_and_b32 v1, 63, v0")
    a("v_lshrrev_b32 v2, 6, v0")
    a("s_and_b32 s4, s2, 7")
    a("v_readfirstlane_b32 s3, v2")
    a("s_lshr_b32 s5, s2, 3")
    a("s_and_b32 s6, s4, 3")
    a("s_lshl_b32 s6, s6, 2")
    a("s_and_b32 s7, s5, 3")
    a("s_add_u32 s6, s6, s7")
    a("s_lshr_b32 s7, s4, 2")
    a("s_lshl_b32 s7, s7, 3")
    a("s_lshr_b32 s8, s5, 2")
    a("s_add_u32 s7, s7, s8")
    a("s_cmp_ge_u32 s7, 15")
    a("s_cbranch_scc1 K2_done")
    a("v_lshlrev_b32 v2, 4, v1")
    a("s_lshl_b32 s9, s6, 3")
    a("s_lshl_b32 s10, s3, 1")
    a("s_add_u32 s9, s9, s10")
    a("s_lshl_b32 s9, s9, 14")
    a("s_lshr_b32 s10, s3, 1")
    a("s_and_b32 s11, s3, 1")
    a("s_mul_i32 s12, s7, 6")
    a("s_mul_i32 s13, s11, 3")
    a("s_add_u32 s12, s12, s13")
    a("s_lshl_b32 s12, s12, 4")
    a("s_add_u32 s12, s12, s10")
    a("s_lshl_b32 s12, s12, 10")
    a("s_mul_i32 s14, s10, 6")
    a("s_add_u32 s14, s14, s13")
    a("s_lshl_b32 s14, s14, 10")
    a("s_waitcnt lgkmcnt(0)")
    srd_off(a, SX, 32, 33, XR_OFF, XR_SIZE)
    srd_off(a, SP, 32, 33, PT_OFF, PT_SIZE)
    srd(a, SO, 28, 29, 2048 * 2752)
    def X(ts, T):
        return 64 + (ts * 16 + T) * 4
    NC = 8
    PD = 4
    def issue_list(c):
        L = []
        for i in range(3):
            g = []
            if i == 0: g.append("s_add_u32 m0, s14, %d" % (c * 2 * 6144))
            g.append("s_add_u32 s58, s12, %d" % (c * 2 * 1024 + i * 16384 - i * 1024))
            g.append("buffer_load_dwordx4 v2, s[%d:%d], s58 offen offset:%d lds" % (SP, SP + 3, i * 1024))
            L.append(g)
        for ts in range(2):
            for tt in range(2):
                g = []
                if tt == 0: g.append("s_add_u32 s59, s9, %d" % (ts * 16384 + c * 2048))
                g.append("buffer_load_dwordx4 %s, v2, s[%d:%d], s59 offen offset:%d" % (vr(X(ts, 2 * c + tt)), SX, SX + 3, tt * 1024))
                L.append(g)
        return L
    for c in range(PD):
        for g in issue_list(c):
            for x in g: a(x)
    a("s_mul_i32 s15, s3, %d" % (32 * K2_RS))
    a("s_add_u32 s15, s15, %d" % K2_STG)
    a("v_and_b32 v3, 15, v1")
    a("v_lshrrev_b32 v4, 4, v1")
    a("v_mul_u32_u24 v5, %d, v3" % K2_RS)
    a("v_lshl_add_u32 v5, v4, 4, v5")
    a("v_add_u32 v3, s15, v5")
    a("s_lshl_b32 s16, s6, 7")
    a("s_lshl_b32 s17, s3, 5")
    a("s_add_u32 s16, s16, s17")
    a("s_mul_i32 s16, s16, 2752")
    a("s_mul_i32 s17, s7, 192")
    a("s_movk_i32 s18, 2752")
    for n in range(6):
        a("v_add_u32 v12, %d, v1" % (64 * n))
        a("v_mul_u32_u24 v13, 0xAAAB, v12")
        a("v_lshrrev_b32 v13, 19, v13")
        a("v_mul_u32_u24 v14, 12, v13")
        a("v_sub_u32 v14, v12, v14")
        a("v_mul_u32_u24 v15, %d, v13" % K2_RS)
        a("v_lshl_add_u32 v15, v14, 4, v15")
        a("v_add_u32 v%d, s15, v15" % (240 + n))
        a("v_lshl_add_u32 v14, v14, 4, s17")
        a("v_mul_u32_u24 v15, 2752, v13")
        a("v_add3_u32 v15, v15, v14, s16")
        a("v_cmp_gt_u32 vcc, s18, v14")
        a("v_mov_b32 v13, 0x7fffffff")
        a("s_nop 0")
        a("v_cndmask_b32 v%d, v13, v15, vcc" % (246 + n))
    stamp(a)
    def acc(ts, g):
        return 192 + (ts * 6 + g) * 4
    def AF(buf, g):
        return 16 + buf * 24 + g * 4
    a("v_add_u32 v10, 0x10000, v2")
    def rd(T, buf):
        for g in range(6):
            off = (T * 6 + g) * 1024
            if off < 65536:
                a("ds_read_b128 %s, v2 offset:%d" % (vr(AF(buf, g)), off))
            else:
                a("ds_read_b128 %s, v10 offset:%d" % (vr(AF(buf, g)), off - 65536))
    def mm(T, buf, pend):
        cnt = 0
        for g in range(6):
            for ts in range(2):
                cc = "0" if T == 0 else vr(acc(ts, g))
                a("%s %s, %s, %s, %s" % (MFMA, vr(acc(ts, g)), vr(AF(buf, g)), vr(X(ts, T)), cc))
                cnt += 1
                if cnt % 3 == 0 and pend:
                    for x in pend.pop(0): a(x)
    def issued_upto(c):
        return min(c - 1 + PD, NC - 1)
    a("s_waitcnt vmcnt(%d)" % (7 * (PD - 1)))
    a("s_barrier")
    stamp(a)
    rd(0, 0); rd(1, 1)
    for c in range(NC):
        a.c("chunk %d" % c)
        pend = issue_list(c + PD) if c + PD < NC else []
        a("s_waitcnt lgkmcnt(6)")
        mm(2 * c, 0, pend)
        n_issued_now = (7 - len(pend)) if c + PD < NC else 0
        if c + 1 < NC:
            full = max(0, min(c + PD - 1, NC - 1) - (c + 1))
            a("s_waitcnt vmcnt(%d)" % (7 * full + n_issued_now))
            a("s_barrier")
            stamp(a)
            rd(2 * c + 2, 0)
            a("s_waitcnt lgkmcnt(6)")
        else:
            a("s_waitcnt lgkmcnt(0)")
        mm(2 * c + 1, 1, pend)
        assert not pend
        if c + 1 < NC:
            rd(2 * c + 3, 1)
    a("s_nop 7")
    for ts in range(2):
        for tp in range(3):
            d = 16 + (ts * 3 + tp) * 4
            a0 = acc(ts, 2 * tp); a1 = acc(ts, 2 * tp + 1)
            a("v_cvt_pk_bf16_f32 v%d, v%d, v%d" % (d, a0, a0 + 1))
            a("v_cvt_pk_bf16_f32 v%d, v%d, v%d" % (d + 1, a0 + 2, a0 + 3))
            a("v_cvt_pk_bf16_f32 v%d, v%d, v%d" % (d + 2, a1, a1 + 1))
            a("v_cvt_pk_bf16_f32 v%d, v%d, v%d" % (d + 3, a1 + 2, a1 + 3))
            a("ds_write_b128 v3, %s offset:%d" % (vr(d), ts * 16 * K2_RS + tp * 64))
    for n in range(6):
        a("ds_read_b128 %s, v%d" % (vr(40 + n * 4), 240 + n))
    for n in range(6):
        a("s_waitcnt lgkmcnt(%d)" % (5 - n))
        a("buffer_store_dwordx4 %s, v%d, s[%d:%d], 0 offen" % (vr(40 + n * 4), 246 + n, SO, SO + 3))
    stamp(a)
    if PROF: a("s_waitcnt vmcnt(0)")
    stamp(a); stamp(a, True)
    stamp_flush(a, 1)
    a.lab("K2_done")
    a("s_endpgm")

HDR = open("cdna_kernels/%s.s.ref" % NAME).read().split("; Override launch")[0]

def kd(name, lds=0, vgpr=256, sgpr=102):
    return """.amdhsa_kernel %s
  .amdhsa_next_free_vgpr %d
  .amdhsa_next_free_sgpr %d
  .amdhsa_accum_offset %d
  .amdhsa_group_segment_fixed_size 0
  .amdhsa_kernarg_size 72
  .amdhsa_user_sgpr_count 2
  .amdhsa_user_sgpr_kernarg_segment_ptr 1
  .amdhsa_system_sgpr_workgroup_id_x 1
  .amdhsa_float_denorm_mode_32 3
  .amdhsa_float_denorm_mode_16_64 3
.end_amdhsa_kernel
""" % (name, vgpr, sgpr, min(256, (vgpr + 3) // 4 * 4))

def main(out):
    a = A()
    s = HDR
    s += "; @launch kernel=%s grid=(256,1,1) block=(256,1,1) lds=%d\n" % (K1, K1_LDS)
    s += "; @launch kernel=%s grid=(256,1,1) block=(256,1,1) lds=%d\n" % (K2, K2_LDS)
    s += '.amdgcn_target "amdgcn-amd-amdhsa--gfx950"\n.text\n'
    s += ".globl %s\n.p2align 8\n.type %s,@function\n" % (K1, K1)
    gen_k1(a)
    s += a.text()
    a = A()
    s += ".globl %s\n.p2align 8\n.type %s,@function\n" % (K2, K2)
    gen_k2(a)
    s += a.text()
    s += '.section .rodata,"a"\n.p2align 6\n'
    s += kd(K1, vgpr=320) + ".p2align 6\n" + kd(K2)
    open(out, "w").write(s)

if __name__ == "__main__":
    for arg in sys.argv[2:]:
        if arg == "prof": PROF = True
        elif "=" in arg:
            k_, v_ = arg.split("="); globals()[k_] = int(v_)
    main(sys.argv[1] if len(sys.argv) > 1 else "cdna_kernels/%s.s" % NAME)
```

```python
import sys

NAME = "standalone__weight_only_int_quip__prompt"
K1 = NAME + "_kernel"
K2 = "quip_k2_kernel"

XR_OFF = 0
XR_SIZE = 2048 * 512 * 2
PT_OFF = XR_SIZE
PT_SIZE = 86 * 16 * 1024

class A:
    def __init__(self):
        self.l = []
    def __call__(self, s):
        self.l.append("    " + s)
    def lab(self, s):
        self.l.append(s + ":")
    def c(self, s):
        self.l.append("    ; " + s)
    def text(self):
        return "\n".join(self.l) + "\n"

def vr(b, n=4):
    return "v[%d:%d]" % (b, b + n - 1)
def sr(b, n=4):
    return "s[%d:%d]" % (b, b + n - 1)

def srd(a, d, lo, hi, size):
    a("s_mov_b32 s%d, s%d" % (d, lo))
    a("s_and_b32 s%d, s%d, 0xffff" % (d + 1, hi))
    a("s_mov_b32 s%d, 0x%x" % (d + 2, size))
    a("s_mov_b32 s%d, 0x20000" % (d + 3))

def srd_off(a, d, lo, hi, off, size):
    a("s_add_u32 s%d, s%d, 0x%x" % (d, lo, off))
    a("s_addc_u32 s%d, s%d, 0" % (d + 1, hi))
    a("s_and_b32 s%d, s%d, 0xffff" % (d + 1, d + 1))
    a("s_mov_b32 s%d, 0x%x" % (d + 2, size))
    a("s_mov_b32 s%d, 0x20000" % (d + 3))

MFMA = "v_mfma_f32_16x16x32_bf16"

class VM:
    def __init__(self, a):
        self.a = a; self.ops = []
    def issue(self, tag):
        self.ops.append(tag)
    def wait(self, tag):
        idx = max(i for i, t in enumerate(self.ops) if t == tag)
        n = len(self.ops) - 1 - idx
        assert n <= 63, n
        self.a("s_waitcnt vmcnt(%d)" % n)

def weave(a, prim, fill, vm=None):
    n = len(prim); m = len(fill)
    k = 0
    for i, p in enumerate(prim):
        a(p)
        want = (i + 1) * m // n if n else m
        while k < want:
            emit_group(a, fill[k], vm); k += 1
    while k < m:
        emit_group(a, fill[k], vm); k += 1

def emit_group(a, g, vm):
    for x in g:
        if isinstance(x, tuple):
            a(x[2]); vm.issue(x[1])
        else:
            a(x)
PROF = False
ROT = 4
FUSED = 1
XREARLY = 1
DBGS = 92
FLG_OFF = 8 << 20
FLGS = 20
ROTA = True
STAMP_OFF = 32 << 20
nst = [0]
def stamp(a, idx=None, real=False):
    if not PROF or idx is None: return
    assert idx < 14
    nst[0] = max(nst[0], idx + 1)
    a("%s s[%d:%d]" % ("s_memrealtime" if real else "s_memtime", 64 + 2 * idx, 65 + 2 * idx))
def stamp_flush(a, kidx):
    if not PROF: return
    a("s_waitcnt lgkmcnt(0)")
    for i in range(14):
        a("v_writelane_b32 v255, s%d, %d" % (64 + 2 * i, i))
    a("s_load_dwordx2 s[96:97], s[0:1], 64")
    a("s_waitcnt lgkmcnt(0)")
    a("s_add_u32 s96, s96, 0x%x" % STAMP_OFF)
    a("s_addc_u32 s97, s97, 0")
    a("s_and_b32 s97, s97, 0xffff")
    a("s_mov_b32 s98, 0x100000")
    a("s_mov_b32 s99, 0x20000")
    a("s_lshl_b32 s100, s2, 2")
    a("s_add_u32 s100, s100, s3")
    a("s_add_u32 s100, s100, %d" % (kidx * 1024))
    a("s_lshl_b32 s100, s100, 6")
    a("v_lshlrev_b32 v254, 2, v1")
    a("v_cmp_gt_u32 vcc, 16, v1")
    a("s_and_saveexec_b64 s[62:63], vcc")
    a("buffer_store_dword v255, v254, s[96:99], s100 offen")
    a("s_mov_b64 exec, s[62:63]")

LDS_A = 131072
LDS_S = 139264
LDS_Z = LDS_S + 6144
K1_LDS = LDS_Z + 6144

def gen_k1(a):
    a.lab(K1)
    a("s_cmp_ge_u32 s2, 256")
    a("s_cbranch_scc1 K1_done")
    a("s_load_dwordx16 s[16:31], s[0:1], 0")
    a("s_load_dwordx2 s[32:33], s[0:1], 64")
    stamp(a, 0, True); stamp(a, 1)
    a("v_and_b32 v1, 63, v0")
    a("v_lshrrev_b32 v2, 6, v0")
    a("s_and_b32 s4, s2, 7")
    a("v_readfirstlane_b32 s3, v2")
    a("s_lshr_b32 s5, s2, 3")
    if FUSED:
        a("s_cmp_lg_u32 s2, 0")
        a("s_cbranch_scc1 K1_notag")
        a("s_cmp_lg_u32 s3, 0")
        a("s_cbranch_scc1 K1_notag")
        a("s_memrealtime s[8:9]")
        a("s_waitcnt lgkmcnt(0)")
        srd(a, DBGS, 30, 31, 256)
        a("s_or_b32 s8, s8, 1")
        a("v_mov_b32 v3, s8")
        a("v_mov_b32 v2, 0")
        a("s_mov_b64 exec, 1")
        a("buffer_store_dword v3, v2, s[%d:%d], 0 offen sc1" % (DBGS, DBGS + 3))
        a("s_mov_b64 exec, -1")
        a.lab("K1_notag")
        a("s_and_b32 s34, s4, 3")
        a("s_lshl_b32 s34, s34, 2")
        a("s_and_b32 s35, s5, 3")
        a("s_add_u32 s34, s34, s35")
        a("s_lshr_b32 s35, s4, 2")
        a("s_lshl_b32 s35, s35, 3")
        a("s_lshr_b32 s8, s5, 2")
        a("s_add_u32 s35, s35, s8")
    a("s_cmp_ge_u32 s5, 30")
    a("s_cbranch_scc1 %s" % ("K1_nop1" if FUSED else "K1_done"))
    a("s_cmp_ge_u32 s5, 22")
    a("s_cbranch_scc1 K1_a")
    gen_1b(a)
    a.lab("K1_a")
    gen_1a(a)
    if FUSED:
        a.lab("K1_nop1")
        a("s_waitcnt lgkmcnt(0)")
        srd(a, DBGS, 30, 31, 256)
        early_sync_loads(a)
        a("s_waitcnt vmcnt(0)")
        get_tag(a, "NP")
        a.lab("PH2")
        gen_ph2(a)
    a.lab("K1_done")
    a("s_endpgm")

def early_sync_groups():
    g = ["s_add_u32 s%d, s32, 0x%x" % (FLGS, FLG_OFF), "s_addc_u32 s%d, s33, 0" % (FLGS + 1),
         "s_and_b32 s%d, s%d, 0xffff" % (FLGS + 1, FLGS + 1), "s_mov_b32 s%d, 4096" % (FLGS + 2), "s_mov_b32 s%d, 0x20000" % (FLGS + 3),
         "v_mov_b32 v211, 0",
         ("vm", "sync", "buffer_load_dword v209, v211, s[%d:%d], 0 offen sc1" % (DBGS, DBGS + 3)),
         "s_add_u32 s8, s34, 16", "s_lshl_b32 s8, s8, 7",
         "v_and_b32 v212, 3, v1", "v_lshl_add_u32 v212, v212, 2, s8",
         ("vm", "sync", "buffer_load_dword v210, v212, s[%d:%d], 0 offen sc1" % (FLGS, FLGS + 3))]
    return g

def early_sync_loads(a):
    for x in early_sync_groups():
        a(x[2] if isinstance(x, tuple) else x)

XRS = 24
def XA(ts, T):
    return 64 + (ts * 16 + T) * 4
def xr_setup(a):
    srd_off(a, XRS, 32, 33, XR_OFF, XR_SIZE)
    a("v_lshlrev_b32 v213, 4, v1")
    a("s_lshl_b32 s9, s34, 3")
    a("s_lshl_b32 s10, s3, 1")
    a("s_add_u32 s9, s9, s10")
    a("s_lshl_b32 s63, s9, 14")
def xr_groups(T4):
    L = []
    for ts in range(2):
        for tt in range(4):
            g = []
            if tt == 0: g.append("s_add_u32 s9, s63, %d" % (ts * 16384 + T4 * 4096))
            b = XA(ts, 4 * T4 + tt)
            g.append(("vm", "xr", "buffer_load_dwordx4 a[%d:%d], v213, s[%d:%d], s9 offen offset:%d" % (b, b + 3, XRS, XRS + 3, tt * 1024)))
            L.append(g)
    return L

def get_tag(a, name):
    a.lab("%s_tl" % name)
    a("v_readfirstlane_b32 s19, v209")
    a("s_nop 3")
    a("s_cmp_lg_u32 s19, 0")
    a("s_cbranch_scc1 %s_td" % name)
    a("s_sleep 2")
    a("buffer_load_dword v209, v211, s[%d:%d], 0 offen sc1" % (DBGS, DBGS + 3))
    a("s_waitcnt vmcnt(0)")
    a("s_branch %s_tl" % name)
    a.lab("%s_td" % name)

def flag_and_go(a, sflag, name, have_tag=False, target="PH2"):
    a("s_waitcnt vmcnt(0)")
    if not have_tag: get_tag(a, name)
    a("s_barrier")
    a("s_cmp_lg_u32 s3, 0")
    a("s_cbranch_scc1 %s" % target)
    a("v_mov_b32 v2, s%d" % sflag)
    a("v_mov_b32 v3, s19")
    a("s_mov_b64 exec, 1")
    a("buffer_store_dword v3, v2, s[%d:%d], 0 offen sc1" % (FLGS, FLGS + 3))
    a("s_mov_b64 exec, -1")
    a("s_branch %s" % target)

def gen_1b(a):
    SQ, SV, SS, SZ, SP = 36, 40, 44, 48, 52
    a.c("==== 1b: P^T tile (32 e x 128 g) ====")
    a("s_lshr_b32 s6, s4, 1")
    a("s_mul_i32 s6, s6, 22")
    a("s_add_u32 s6, s6, s5")
    a("s_lshr_b32 s7, s6, 3")
    a("s_and_b32 s6, s6, 7")
    a("s_and_b32 s8, s4, 1")
    a("s_lshl_b32 s8, s8, 3")
    a("s_add_u32 s6, s6, s8")
    a("v_lshrrev_b32 v28, 3, v1")
    a("v_and_b32 v29, 7, v1")
    a("v_lshrrev_b32 v30, 4, v1")
    a("v_and_b32 v31, 15, v1")
    a("s_lshr_b32 s9, s6, 2")
    a("s_mul_i32 s9, s9, 2752")
    a("v_lshlrev_b32 v32, 2, v0")
    a("v_add_u32 v32, s9, v32")
    a("s_lshl_b32 s10, s6, 5")
    a("v_add_u32 v33, s10, v28")
    a("s_movk_i32 s11, 5504")
    a("v_mul_lo_u32 v33, v33, s11")
    a("v_lshl_add_u32 v2, v29, 4, v33")
    a("v_add_u32 v3, %d, v2" % (8 * 5504))
    a("v_add_u32 v4, %d, v2" % (16 * 5504))
    a("v_add_u32 v5, %d, v2" % (24 * 5504))
    a("v_lshrrev_b32 v33, 1, v31")
    a("v_xor_b32 v33, v33, v30")
    a("v_and_b32 v34, 1, v1")
    a("v_lshl_or_b32 v35, v33, 1, v34")
    a("v_lshlrev_b32 v35, 4, v35")
    a("v_mul_u32_u24 v36, 2752, v30")
    a("s_lshl_b32 s12, s7, 8")
    a("v_add3_u32 v6, v35, v36, s12")
    a("v_xor_b32 v35, 128, v35")
    a("v_add3_u32 v7, v35, v36, s12")
    a("s_waitcnt lgkmcnt(0)")
    srd(a, SQ, 18, 19, 512 * 5504)
    srd(a, SV, 26, 27, 1376 * 2752)
    srd(a, SS, 20, 21, 4 * 2752)
    srd(a, SZ, 22, 23, 4 * 2752)
    srd_off(a, SP, 32, 33, PT_OFF, PT_SIZE)
    if FUSED: srd(a, DBGS, 30, 31, 256)
    for r in range(3):
        a("buffer_load_dword v%d, v32, s[%d:%d], 0 offen offset:%d" % (40 + r, SS, SS + 3, 1024 * r))
    for r in range(3):
        a("buffer_load_dword v%d, v32, s[%d:%d], 0 offen offset:%d" % (43 + r, SZ, SZ + 3, 1024 * r))
    a("s_lshl_b32 s56, s3, 7")
    a("s_mul_i32 s57, s3, 88064")
    a("s_lshl_b32 s59, s3, 15")

    a("s_add_u32 s61, s6, s7")
    if ROT == 11:
        a("s_cmp_ge_u32 s61, 22")
        a("s_cselect_b32 s60, 22, 0")
        a("s_sub_u32 s61, s61, s60")
        a("s_cmp_ge_u32 s61, 11")
        a("s_cselect_b32 s60, 11, 0")
        a("s_sub_u32 s61, s61, s60")
    elif ROT == 2:
        a("s_and_b32 s61, s61, 1")
        a("s_mul_i32 s61, s61, 5")
    elif ROT == 4:
        a("s_and_b32 s61, s61, 3")
        a("s_mul_i32 s61, s61, 3")
    elif ROT == 3:
        a("s_mul_i32 s60, s61, 11")
        a("s_lshr_b32 s60, s60, 5")
        a("s_mul_i32 s60, s60, 3")
        a("s_sub_u32 s61, s61, s60")
        a("s_mul_i32 s61, s61, 4")
    else:
        a("s_mov_b32 s61, 0")
    a("s_lshl_b32 s61, s61, 9")
    a("s_mov_b32 s60, s61")
    vm = VM(a)
    for r in range(6): vm.issue("tab")
    def adv(r):
        return ["s_add_u32 s%d, s%d, 512" % (r, r), "s_cmp_eq_u32 s%d, 5632" % r, "s_cselect_b32 s%d, 0, s%d" % (r, r)]
    QB = 80
    def grp(k):
        slot = k % 4
        L = []
        for i in range(4):
            g = []
            if i == 0: g.append("s_add_u32 s58, s56, s61")
            g.append(("vm", k, "buffer_load_dwordx4 %s, v%d, s[%d:%d], s58 offen" % (vr(QB + slot * 16 + i * 4), 2 + i, SQ, SQ + 3)))
            L.append(g)
        for b in range(8):
            g = []
            if b == 0:
                g += ["s_mul_i32 s62, s61, 688", "s_add_u32 s62, s62, s57"]
            if b % 4 == 0:
                g.append("s_add_u32 m0, s59, %d" % (slot * 8192 + (b // 4) * 4096))
            g.append("s_add_u32 s58, s62, %d" % (4 * b * 2752 - (b % 4) * 1024))
            g.append(("vm", k, "buffer_load_dwordx4 v%d, s[%d:%d], s58 offen offset:%d lds" % (6 + ((b >> 1) & 1), SV, SV + 3, (b % 4) * 1024)))
            if b == 7: g += adv(61)
            L.append(g)
        return L
    for k in range(2):
        for g in grp(k): emit_group(a, g, vm)
    a("v_bfe_u32 v33, v1, 2, 2")
    a("v_and_b32 v34, 3, v1")
    a("v_lshl_add_u32 v35, v30, 3, v33")
    a("v_lshlrev_b32 v35, 8, v35")
    a("v_and_b32 v36, 1, v30")
    a("v_lshl_add_u32 v36, v36, 2, v33")
    a("v_lshl_add_u32 v35, v36, 5, v35")
    a("v_lshl_add_u32 v35, v34, 3, v35")
    a("v_add_u32 v8, s59, v35")
    for n in range(1, 8):
        a("v_xor_b32 v%d, %d, v8" % (8 + n, n * 32))
    a("s_lshl_b32 s13, s3, 11")
    a("s_add_u32 s13, s13, %d" % LDS_A)
    a("v_lshrrev_b32 v33, 5, v1")
    a("v_lshrrev_b32 v34, 1, v29")
    a("v_and_b32 v35, 1, v29")
    a("v_lshlrev_b32 v35, 3, v35")
    a("v_lshl_add_u32 v35, v28, 6, v35")
    a("v_add_u32 v35, s13, v35")
    for x in range(2):
        a("v_add_u32 v36, %d, v33" % (2 * x))
        a("v_sub_u32 v36, 0, v36")
        a("v_and_b32 v36, 3, v36")
        a("v_xor_b32 v36, v36, v34")
        a("v_lshl_add_u32 v36, v36, 4, v35")
        a("v_add_u32 v%d, %d, v36" % (16 + x, 512 * x))
    a("v_lshrrev_b32 v33, 2, v31")
    a("v_sub_u32 v33, 0, v33")
    a("v_and_b32 v33, 3, v33")
    a("v_xor_b32 v33, v33, v30")
    a("v_lshlrev_b32 v33, 4, v33")
    a("v_lshl_add_u32 v33, v31, 6, v33")
    a("v_add_u32 v18, s13, v33")
    a("s_add_u32 s14, s56, %d" % LDS_S)
    a("v_lshl_add_u32 v19, v29, 4, s14")
    a("v_lshlrev_b32 v46, 3, v0")
    a("v_add_u32 v46, %d, v46" % LDS_S)
    a("s_mov_b32 s15, 0x4b800000")
    stamp(a, 2)
    vm.wait("tab")
    stamp(a, 3)
    for r in range(3):
        a("v_lshlrev_b32 v48, 16, v%d" % (40 + r))
        a("v_and_b32 v49, 0xffff0000, v%d" % (40 + r))
        a("v_lshlrev_b32 v50, 16, v%d" % (43 + r))
        a("v_and_b32 v51, 0xffff0000, v%d" % (43 + r))
        a("v_mul_f32 v52, -v50, v48")
        a("v_mul_f32 v53, -v51, v49")
        a("v_mul_f32 v48, s15, v48")
        a("v_mul_f32 v49, s15, v49")
        a("ds_write_b64 v46, v[48:49] offset:%d" % (r * 2048))
        a("ds_write_b64 v46, v[52:53] offset:%d" % (6144 + r * 2048))
    a("s_waitcnt lgkmcnt(0)")
    a("s_barrier")

    NK = 11
    def acc(t, n):
        return (t * 8 + n) * 4
    def ar(b, n=4):
        return "a[%d:%d]" % (b, b + n - 1)
    def AFR(buf): return 40 if buf == 0 else 144
    def BFR(buf): return 48 if buf == 0 else 152
    def prep(k):
        slot = k % 4; buf = k % 2
        L = []
        L.append(["v_add_u32 v208, s60, v19"] + adv(60) + ["ds_read_b128 v[20:23], v208", "ds_read_b128 v[24:27], v208 offset:6144"])
        for n in range(4):
            L.append(["ds_read_b64_tr_b16 v[%d:%d], v%d offset:%d" % (BFR(buf) + n * 4 + 2 * h, BFR(buf) + n * 4 + 2 * h + 1, 8 + n, slot * 8192 + h * 1024) for h in range(2)])
        first = True
        for i in range(4):
            q = QB + slot * 16 + i * 4
            t = 28 + (i % 2) * 4
            p = 36 + (i % 2) * 2
            g = []
            if first: g.append("s_waitcnt lgkmcnt(8)"); first = False
            for e in range(4):
                g.append("v_fma_mix_f32 v%d, v%d, v%d, v%d op_sel_hi:[1,0,0]" % (t + e, q + e, 20 + e, 24 + e))
            L.append(g[:len(g) - 2]); g = g[len(g) - 2:]
            g.append("v_cvt_pk_bf16_f32 v%d, v%d, v%d" % (p, t, t + 1))
            g.append("v_cvt_pk_bf16_f32 v%d, v%d, v%d" % (p + 1, t + 2, t + 3))
            g.append("ds_write_b64 v%d, v[%d:%d] offset:%d" % (16 + (i & 1), p, p + 1, (i >> 1) * 1024))
            L.append(g)
        L.append(["ds_read_b128 %s, v18" % vr(AFR(buf)), "ds_read_b128 %s, v18 offset:1024" % vr(AFR(buf) + 4)])
        for n in range(4, 8):
            L.append(["ds_read_b64_tr_b16 v[%d:%d], v%d offset:%d" % (BFR(buf) + n * 4 + 2 * h, BFR(buf) + n * 4 + 2 * h + 1, 8 + n, slot * 8192 + h * 1024) for h in range(2)])
        return L
    vm.wait(0)
    for g in prep(0): emit_group(a, g, vm)
    for g in grp(2): emit_group(a, g, vm)
    issued = 3
    for k in range(NK):
        buf = k % 2
        a.c("substep %d" % k)
        mf = []
        for n in range(8):
            for t in range(2):
                c = "0" if k == 0 else ar(acc(t, n))
                mf.append("%s %s, %s, %s, %s" % (MFMA, ar(acc(t, n)), vr(AFR(buf) + 4 * t), vr(BFR(buf) + 4 * n), c))
        a("s_waitcnt lgkmcnt(0)")
        fill = []
        if k + 1 < NK:
            vm.wait(k + 1)
            if k == 0: stamp(a, 4)
            if k == 4: stamp(a, 5)
            fill = prep(k + 1)
        vf = []
        tgt = min(k + 4, NK - 1)
        while issued <= tgt:
            vf += grp(issued); issued += 1
        if FUSED and XREARLY:
            if k == 5:
                vf += [early_sync_groups()]
            if k == 7:
                vm.wait("sync")
                get_tag(a, "FB")
                poll(a, "PXB", 212, 210, False, True, 2)
                xr_setup(a)
            if k >= 7:
                vf += xr_groups(k - 7)
        merged = []
        i = j = 0
        while i < len(fill) or j < len(vf):
            if i < len(fill): merged.append(fill[i]); i += 1
            if j < len(vf) and (j * max(1, len(fill)) <= i * len(vf) or i >= len(fill)):
                merged.append(vf[j]); j += 1
        weave(a, mf, merged, vm)
    stamp(a, 6)
    if FUSED and not XREARLY: early_sync_loads(a)
    a("s_lshl_b32 s13, s3, 12")
    a("v_lshlrev_b32 v2, 4, v1")
    a("v_add_u32 v3, s13, v2")
    a("s_lshl_b32 s13, s3, 14")
    a("v_add_u32 v4, s13, v2")
    a("v_lshrrev_b32 v30, 4, v1")
    a("v_bfe_u32 v5, v1, 2, 1")
    a("v_lshlrev_b32 v5, 14, v5")
    a("v_lshl_add_u32 v5, v30, 8, v5")
    a("v_bfe_u32 v6, v1, 3, 1")
    a("v_lshl_add_u32 v5, v6, 6, v5")
    a("v_and_b32 v6, 3, v1")
    a("v_lshl_add_u32 v5, v6, 4, v5")
    a("s_lshl_b32 s13, s7, 2")
    a("s_add_u32 s13, s13, s3")
    a("s_lshl_b32 s13, s13, 15")
    a("s_lshl_b32 s14, s6, 10")
    a("s_add_u32 s13, s13, s14")
    for d in range(1, 4):
        a("s_add_u32 s14, s3, %d" % d)
        a("s_and_b32 s14, s14, 3")
        a("s_lshl_b32 s14, s14, 12")
        a("v_add_u32 v%d, s14, v4" % (8 + d))
    a("s_barrier")
    for wd in range(4):
        a("s_cmp_eq_u32 s3, %d" % wd)
        a("s_cbranch_scc1 K1b_own%d" % wd)
        for nl in range(2):
            for t in range(2):
                a("ds_write_b128 v3, %s offset:%d" % (ar(acc(t, 2 * wd + nl)), wd * 16384 + (2 * nl + t) * 1024))
        a("s_branch K1b_next%d" % wd)
        a.lab("K1b_own%d" % wd)
        for nl in range(2):
            for t in range(2):
                for j in range(4):
                    a("v_accvgpr_read_b32 v%d, a%d" % (48 + (2 * nl + t) * 4 + j, acc(t, 2 * wd + nl) + j))
        a.lab("K1b_next%d" % wd)
    a("s_waitcnt lgkmcnt(0)")
    a("s_barrier")
    for d in range(1, 4):
        for idx in range(4):
            a("ds_read_b128 %s, v%d offset:%d" % (vr(48 + (d * 4 + idx) * 4), 8 + d, idx * 1024))
    a("s_waitcnt lgkmcnt(8)")
    for j in range(16):
        a("v_add_f32 v%d, v%d, v%d" % (48 + j, 48 + j, 64 + j))
    a("s_waitcnt lgkmcnt(0)")
    for j in range(16):
        a("v_add_f32 v%d, v%d, v%d" % (80 + j, 80 + j, 96 + j))
    for j in range(16):
        a("v_add_f32 v%d, v%d, v%d" % (48 + j, 48 + j, 80 + j))
    for nl in range(2):
        b = 48 + nl * 8
        d = 112 + nl * 4
        for j in range(4):
            a("v_cvt_pk_bf16_f32 v%d, v%d, v%d" % (d + j, b + 2 * j, b + 2 * j + 1))
        a("buffer_store_dwordx4 %s, v5, s[%d:%d], s13 offen offset:%d%s" % (vr(d), SP, SP + 3, nl * 128, " sc1" if FUSED else ""))
    stamp(a, 7)
    if FUSED:
        a("s_lshl_b32 s10, s7, 7")
        a("s_lshl_b32 s11, s6, 2")
        a("s_add_u32 s10, s10, s11")
        flag_and_go(a, 10, "FB2", have_tag=XREARLY, target="PH2B" if XREARLY else "PH2")
        return
    if PROF: a("s_waitcnt vmcnt(0)")
    stamp(a, 12); stamp(a, 13, True)
    stamp_flush(a, 0)
    a("s_endpgm")

def gen_1a(a):
    SX, SU, SO = 36, 40, 44
    a.c("==== 1a: xr tile (128 s x 128 e) ====")
    a("s_sub_u32 s5, s5, 22")
    a("s_and_b32 s6, s5, 1")
    a("s_lshl_b32 s7, s4, 1")
    a("s_add_u32 s6, s6, s7")
    a("s_lshr_b32 s7, s5, 1")
    a("v_lshrrev_b32 v28, 3, v1")
    a("v_and_b32 v29, 7, v1")
    a("v_lshrrev_b32 v30, 4, v1")
    a("v_and_b32 v31, 15, v1")
    a("s_lshl_b32 s8, s6, 7")
    a("s_lshl_b32 s9, s3, 5")
    a("s_add_u32 s8, s8, s9")
    a("v_add_u32 v33, s8, v28")
    a("v_lshlrev_b32 v33, 10, v33")
    a("v_xor_b32 v34, v29, v30")
    a("v_lshl_add_u32 v2, v34, 4, v33")
    a("v_xor_b32 v3, 64, v2")
    a("v_lshrrev_b32 v33, 1, v31")
    a("v_xor_b32 v33, v33, v30")
    a("v_and_b32 v34, 1, v1")
    a("v_lshl_or_b32 v35, v33, 1, v34")
    a("v_lshlrev_b32 v35, 4, v35")
    a("v_lshl_add_u32 v35, v30, 10, v35")
    a("s_lshl_b32 s8, s7, 8")
    a("v_add_u32 v4, s8, v35")
    a("v_xor_b32 v5, 128, v4")
    a("s_waitcnt lgkmcnt(0)")
    srd(a, SX, 16, 17, 2048 * 1024)
    srd(a, SU, 24, 25, 512 * 1024)
    srd_off(a, SO, 32, 33, XR_OFF, XR_SIZE)
    if FUSED: srd(a, DBGS, 30, 31, 256)
    a("s_lshl_b32 s56, s3, 12")
    a("s_lshl_b32 s57, s3, 14")
    a("s_lshl_b32 s61, s7, 1")
    a("s_add_u32 s61, s61, s6")
    a("s_and_b32 s61, s61, 7")
    if not ROTA: a("s_mov_b32 s61, 0")
    def issue_list(kk):
        slot = kk % 4
        L = []
        L.append(["s_lshl_b32 s62, s61, 7",
                  "s_lshl_b32 s63, s61, 16",
                  "s_add_u32 s63, s63, s57",
                  "s_add_u32 m0, s56, %d" % (slot * 32768),
                  "s_mov_b32 s58, s62",
                  "buffer_load_dwordx4 v2, s[%d:%d], s58 offen lds" % (SX, SX + 3)])
        for b in range(1, 4):
            L.append(["s_add_u32 s58, s62, %d" % (7168 * b),
                      "buffer_load_dwordx4 v%d, s[%d:%d], s58 offen offset:%d lds" % (2 + (b & 1), SX, SX + 3, b * 1024)])
        for b in range(4):
            g = []
            if b == 0: g.append("s_add_u32 m0, s56, %d" % (slot * 32768 + 16384))
            g.append("s_add_u32 s58, s63, %d" % (4 * b * 1024 - b * 1024))
            g.append("buffer_load_dwordx4 v%d, s[%d:%d], s58 offen offset:%d lds" % (4 + ((b >> 1) & 1), SU, SU + 3, b * 1024))
            if b == 3: g += ["s_add_u32 s61, s61, 1", "s_and_b32 s61, s61, 7"]
            L.append(g)
        return L
    for kk in range(3):
        for g in issue_list(kk):
            for x in g: a(x)
    a("s_and_b32 s10, s3, 1")
    a("s_lshr_b32 s11, s3, 1")
    a("s_lshl_b32 s12, s11, 13")
    a("v_lshrrev_b32 v33, 1, v31")
    a("v_xor_b32 v33, v33, v30")
    a("v_lshlrev_b32 v33, 4, v33")
    a("v_lshl_add_u32 v33, v31, 7, v33")
    a("v_add_u32 v6, s12, v33")
    a("v_xor_b32 v7, 64, v6")
    a("v_add_u32 v8, 0x10000, v6")
    a("v_add_u32 v9, 0x10000, v7")
    a("v_bfe_u32 v33, v1, 2, 2")
    a("v_and_b32 v34, 3, v1")
    a("v_lshl_add_u32 v35, v30, 3, v33")
    a("v_lshlrev_b32 v35, 8, v35")
    a("v_and_b32 v36, 1, v30")
    a("v_lshl_add_u32 v36, v36, 2, v33")
    a("v_lshl_add_u32 v35, v36, 5, v35")
    a("v_lshl_add_u32 v35, v34, 3, v35")
    a("s_lshl_b32 s12, s10, 7")
    a("v_xor_b32 v35, s12, v35")
    a("v_add_u32 v10, 16384, v35")
    for te in range(1, 4):
        a("v_xor_b32 v%d, %d, v10" % (10 + te, te * 32))
    for te in range(4):
        a("v_add_u32 v%d, 0x10000, v%d" % (14 + te, 10 + te))
    def acc(te, ts):
        return 144 + (te * 4 + ts) * 4
    for kk in range(8):
        slot = kk % 4
        hi = slot // 2
        so = (slot % 2) * 32768
        a.c("1a step %d" % kk)
        a("s_waitcnt vmcnt(%d)" % (8 * (min(kk + 2, 7) - kk)))
        a("s_barrier")
        if kk == 0: stamp(a, 4)
        if kk == 4: stamp(a, 5)
        pend = issue_list(kk + 3) if kk + 3 < 8 else []
        for hh in range(2):
            for te in range(4):
                for h in range(2):
                    r = 32 + hh * 16 + te * 4 + 2 * h
                    a("ds_read_b64_tr_b16 v[%d:%d], v%d offset:%d" % (r, r + 1, 10 + 4 * hi + te, so + hh * 8192 + h * 1024))
            for ts in range(4):
                a("ds_read_b128 %s, v%d offset:%d" % (vr(64 + hh * 16 + ts * 4), 6 + 2 * hi + hh, so + ts * 2048))
        a("s_waitcnt lgkmcnt(12)")
        cnt = 0
        for hh in range(2):
            if hh == 1:
                a("s_waitcnt lgkmcnt(0)")
            for te in range(4):
                for ts in range(4):
                    c = "0" if (kk == 0 and hh == 0) else vr(acc(te, ts))
                    a("%s %s, %s, %s, %s" % (MFMA, vr(acc(te, ts)), vr(32 + hh * 16 + te * 4), vr(64 + hh * 16 + ts * 4), c))
                    cnt += 1
                    if cnt % 3 == 0 and pend:
                        for x in pend.pop(0): a(x)
        assert not pend
    stamp(a, 6)
    if FUSED: early_sync_loads(a)
    a("v_lshlrev_b32 v2, 4, v1")
    a("s_lshl_b32 s12, s6, 3")
    a("s_lshl_b32 s13, s11, 2")
    a("s_add_u32 s12, s12, s13")
    a("s_lshl_b32 s12, s12, 4")
    a("s_lshl_b32 s13, s7, 2")
    a("s_add_u32 s12, s12, s13")
    a("s_lshl_b32 s13, s10, 1")
    a("s_add_u32 s12, s12, s13")
    a("s_lshl_b32 s12, s12, 10")
    a("s_nop 7")
    n = 0
    for ts in range(4):
        a("s_add_u32 s13, s12, %d" % (ts * 16384))
        for m in range(2):
            d = 32 + (n % 4) * 4
            n += 1
            a0 = acc(2 * m, ts); a1 = acc(2 * m + 1, ts)
            a("v_cvt_pk_bf16_f32 v%d, v%d, v%d" % (d, a0, a0 + 1))
            a("v_cvt_pk_bf16_f32 v%d, v%d, v%d" % (d + 1, a0 + 2, a0 + 3))
            a("v_cvt_pk_bf16_f32 v%d, v%d, v%d" % (d + 2, a1, a1 + 1))
            a("v_cvt_pk_bf16_f32 v%d, v%d, v%d" % (d + 3, a1 + 2, a1 + 3))
            a("buffer_store_dwordx4 %s, v2, s[%d:%d], s13 offen offset:%d%s" % (vr(d), SO, SO + 3, m * 1024, " sc1" if FUSED else ""))
    stamp(a, 7)
    if FUSED:
        a("s_add_u32 s10, s6, 16")
        a("s_lshl_b32 s10, s10, 7")
        a("s_lshl_b32 s11, s7, 2")
        a("s_add_u32 s10, s10, s11")
        flag_and_go(a, 10, "FA")
        return
    if PROF: a("s_waitcnt vmcnt(0)")
    stamp(a, 12); stamp(a, 13, True)
    stamp_flush(a, 0)
    a("s_endpgm")

K2_STG = 98304
K2_RS = 208
K2_LDS = K2_STG + 4 * 32 * K2_RS

def poll(a, name, vaddr, vdst, wave0_only, have_early, sleep=1):
    if wave0_only:
        a("s_cmp_lg_u32 s3, 0")
        a("s_cbranch_scc1 %s_done" % name)
    a("s_mov_b32 s8, 0")
    if have_early:
        a("s_branch %s_chk" % name)
    a.lab("%s_loop" % name)
    a("buffer_load_dword v%d, v%d, s[%d:%d], 0 offen sc1" % (vdst, vaddr, FLGS, FLGS + 3))
    a("s_waitcnt vmcnt(0)")
    a.lab("%s_chk" % name)
    a("v_cmp_ne_u32 vcc, s19, v%d" % vdst)
    a("s_nop 4")
    a("s_cbranch_vccz %s_done" % name)
    a("s_sleep %d" % sleep)
    a("s_add_u32 s8, s8, 1")
    a("s_cmp_lt_u32 s8, 0x40000")
    a("s_cbranch_scc1 %s_loop" % name)
    a.lab("%s_done" % name)

def gen_ph2(a):
    SX, SP, SO = 36, 40, 44
    a.c("==== phase 2: y tile (128 s x 96 g) ====")
    stamp(a, 8)
    a("s_cmp_ge_u32 s35, 15")
    a("s_cbranch_scc1 PH2_exit")
    poll(a, "PX", 212, 210, False, True, 2)
    stamp(a, 9)
    xr_setup(a)
    vm = VM(a)
    for T4 in range(4):
        for g in xr_groups(T4): emit_group(a, g, vm)
    a.lab("PH2B")
    srd_off(a, SP, 32, 33, PT_OFF, PT_SIZE)
    srd(a, SO, 28, 29, 2048 * 2752)
    a("v_lshlrev_b32 v2, 4, v1")
    def X(ts, T):
        return XA(ts, T)
    def ar(b, n=4):
        return "a[%d:%d]" % (b, b + n - 1)
    a("s_lshr_b32 s10, s3, 1")
    a("s_and_b32 s11, s3, 1")
    a("s_mul_i32 s12, s35, 6")
    a("s_mul_i32 s13, s11, 3")
    a("s_add_u32 s12, s12, s13")
    a("s_lshl_b32 s12, s12, 4")
    a("s_add_u32 s12, s12, s10")
    a("s_lshl_b32 s12, s12, 10")
    a("s_mul_i32 s14, s10, 6")
    a("s_add_u32 s14, s14, s13")
    a("s_lshl_b32 s14, s14, 10")
    a("s_mul_i32 s16, s35, 96")
    a("s_add_u32 s17, s16, 95")
    a("s_lshr_b32 s16, s16, 7")
    a("s_lshr_b32 s17, s17, 7")
    a("s_min_u32 s17, s17, 10")
    a("s_sub_u32 s17, s17, s16")
    a("s_lshl_b32 s16, s16, 7")
    a("s_lshl_b32 s17, s17, 7")
    a("v_bfe_u32 v12, v1, 4, 1")
    a("v_mul_u32_u24 v12, s17, v12")
    a("v_and_b32 v13, 15, v1")
    a("v_lshl_add_u32 v12, v13, 2, v12")
    a("v_add_u32 v11, s16, v12")
    a("s_mul_i32 s15, s3, %d" % (32 * K2_RS))
    a("s_add_u32 s15, s15, %d" % K2_STG)
    a("v_and_b32 v3, 15, v1")
    a("v_lshrrev_b32 v4, 4, v1")
    a("v_mul_u32_u24 v5, %d, v3" % K2_RS)
    a("v_lshl_add_u32 v5, v4, 4, v5")
    a("v_add_u32 v3, s15, v5")
    a("s_lshl_b32 s16, s34, 7")
    a("s_lshl_b32 s17, s3, 5")
    a("s_add_u32 s16, s16, s17")
    a("s_mul_i32 s16, s16, 2752")
    a("s_mul_i32 s17, s35, 192")
    a("s_movk_i32 s18, 2752")
    for n in range(6):
        a("v_add_u32 v12, %d, v1" % (64 * n))
        a("v_mul_u32_u24 v13, 0xAAAB, v12")
        a("v_lshrrev_b32 v13, 19, v13")
        a("v_mul_u32_u24 v14, 12, v13")
        a("v_sub_u32 v14, v12, v14")
        a("v_mul_u32_u24 v15, %d, v13" % K2_RS)
        a("v_lshl_add_u32 v15, v14, 4, v15")
        a("v_add_u32 v%d, s15, v15" % (240 + n))
        a("v_lshl_add_u32 v14, v14, 4, s17")
        a("v_mul_u32_u24 v15, 2752, v13")
        a("v_add3_u32 v15, v15, v14, s16")
        a("v_cmp_gt_u32 vcc, s18, v14")
        a("v_mov_b32 v13, 0x7fffffff")
        a("s_nop 0")
        a("v_cndmask_b32 v%d, v13, v15, vcc" % (246 + n))
    a("v_add_u32 v10, 0x10000, v2")
    stamp(a, 10)
    poll(a, "PP", 11, 12, True, False, 2)
    a("s_barrier")
    stamp(a, 11)
    NC = 8
    PD = 4
    def issue_list(c):
        L = []
        for i in range(3):
            g = []
            if i == 0: g.append("s_add_u32 m0, s14, %d" % (c * 2 * 6144))
            g.append("s_add_u32 s58, s12, %d" % (c * 2 * 1024 + i * 16384 - i * 1024))
            g.append(("vm", c, "buffer_load_dwordx4 v2, s[%d:%d], s58 offen offset:%d lds" % (SP, SP + 3, i * 1024)))
            L.append(g)
        return L
    for c in range(PD):
        for g in issue_list(c): emit_group(a, g, vm)
    def acc(ts, g):
        return 192 + (ts * 6 + g) * 4
    def AF(buf, g):
        return 16 + buf * 24 + g * 4
    def rd(T, buf):
        for g in range(6):
            off = (T * 6 + g) * 1024
            if off < 65536:
                a("ds_read_b128 %s, v2 offset:%d" % (vr(AF(buf, g)), off))
            else:
                a("ds_read_b128 %s, v10 offset:%d" % (vr(AF(buf, g)), off - 65536))
    def mlist(T, buf):
        L = []
        for g in range(6):
            for ts in range(2):
                cc = "0" if T == 0 else vr(acc(ts, g))
                L.append("%s %s, %s, %s, %s" % (MFMA, vr(acc(ts, g)), vr(AF(buf, g)), ar(X(ts, T)), cc))
        return L
    vm.wait(0)
    a("s_barrier")
    rd(0, 0); rd(1, 1)
    for c in range(NC):
        a.c("chunk %d" % c)
        pend = issue_list(c + PD) if c + PD < NC else []
        a("s_waitcnt lgkmcnt(6)")
        weave(a, mlist(2 * c, 0), pend, vm)
        if c + 1 < NC:
            vm.wait(c + 1)
            a("s_barrier")
            rd(2 * c + 2, 0)
            a("s_waitcnt lgkmcnt(6)")
        else:
            a("s_waitcnt lgkmcnt(0)")
        weave(a, mlist(2 * c + 1, 1), [], vm)
        if c + 1 < NC:
            rd(2 * c + 3, 1)
    a("s_nop 7")
    for ts in range(2):
        for tp in range(3):
            d = 16 + (ts * 3 + tp) * 4
            a0 = acc(ts, 2 * tp); a1 = acc(ts, 2 * tp + 1)
            a("v_cvt_pk_bf16_f32 v%d, v%d, v%d" % (d, a0, a0 + 1))
            a("v_cvt_pk_bf16_f32 v%d, v%d, v%d" % (d + 1, a0 + 2, a0 + 3))
            a("v_cvt_pk_bf16_f32 v%d, v%d, v%d" % (d + 2, a1, a1 + 1))
            a("v_cvt_pk_bf16_f32 v%d, v%d, v%d" % (d + 3, a1 + 2, a1 + 3))
            a("ds_write_b128 v3, %s offset:%d" % (vr(d), ts * 16 * K2_RS + tp * 64))
    for n in range(6):
        a("ds_read_b128 %s, v%d" % (vr(40 + n * 4), 240 + n))
    for n in range(6):
        a("s_waitcnt lgkmcnt(%d)" % (5 - n))
        a("buffer_store_dwordx4 %s, v%d, s[%d:%d], 0 offen" % (vr(40 + n * 4), 246 + n, SO, SO + 3))
    a.lab("PH2_exit")
    if PROF: a("s_waitcnt vmcnt(0)")
    stamp(a, 12); stamp(a, 13, True)
    stamp_flush(a, 0)


def gen_k2(a):
    SX, SP, SO = 36, 40, 44
    a.lab(K2)
    a("s_cmp_ge_u32 s2, 256")
    a("s_cbranch_scc1 K2_done")
    a("s_load_dwordx2 s[28:29], s[0:1], 48")
    a("s_load_dwordx2 s[32:33], s[0:1], 64")
    stamp(a, 0, True); stamp(a, 1)
    a("v_and_b32 v1, 63, v0")
    a("v_lshrrev_b32 v2, 6, v0")
    a("s_and_b32 s4, s2, 7")
    a("v_readfirstlane_b32 s3, v2")
    a("s_lshr_b32 s5, s2, 3")
    a("s_and_b32 s6, s4, 3")
    a("s_lshl_b32 s6, s6, 2")
    a("s_and_b32 s7, s5, 3")
    a("s_add_u32 s6, s6, s7")
    a("s_lshr_b32 s7, s4, 2")
    a("s_lshl_b32 s7, s7, 3")
    a("s_lshr_b32 s8, s5, 2")
    a("s_add_u32 s7, s7, s8")
    a("s_cmp_ge_u32 s7, 15")
    a("s_cbranch_scc1 K2_done")
    a("v_lshlrev_b32 v2, 4, v1")
    a("s_lshl_b32 s9, s6, 3")
    a("s_lshl_b32 s10, s3, 1")
    a("s_add_u32 s9, s9, s10")
    a("s_lshl_b32 s9, s9, 14")
    a("s_lshr_b32 s10, s3, 1")
    a("s_and_b32 s11, s3, 1")
    a("s_mul_i32 s12, s7, 6")
    a("s_mul_i32 s13, s11, 3")
    a("s_add_u32 s12, s12, s13")
    a("s_lshl_b32 s12, s12, 4")
    a("s_add_u32 s12, s12, s10")
    a("s_lshl_b32 s12, s12, 10")
    a("s_mul_i32 s14, s10, 6")
    a("s_add_u32 s14, s14, s13")
    a("s_lshl_b32 s14, s14, 10")
    a("s_waitcnt lgkmcnt(0)")
    srd_off(a, SX, 32, 33, XR_OFF, XR_SIZE)
    srd_off(a, SP, 32, 33, PT_OFF, PT_SIZE)
    srd(a, SO, 28, 29, 2048 * 2752)
    def X(ts, T):
        return 64 + (ts * 16 + T) * 4
    NC = 8
    PD = 4
    def issue_list(c):
        L = []
        for i in range(3):
            g = []
            if i == 0: g.append("s_add_u32 m0, s14, %d" % (c * 2 * 6144))
            g.append("s_add_u32 s58, s12, %d" % (c * 2 * 1024 + i * 16384 - i * 1024))
            g.append("buffer_load_dwordx4 v2, s[%d:%d], s58 offen offset:%d lds" % (SP, SP + 3, i * 1024))
            L.append(g)
        for ts in range(2):
            for tt in range(2):
                g = []
                if tt == 0: g.append("s_add_u32 s59, s9, %d" % (ts * 16384 + c * 2048))
                g.append("buffer_load_dwordx4 %s, v2, s[%d:%d], s59 offen offset:%d" % (vr(X(ts, 2 * c + tt)), SX, SX + 3, tt * 1024))
                L.append(g)
        return L
    for c in range(PD):
        for g in issue_list(c):
            for x in g: a(x)
    a("s_mul_i32 s15, s3, %d" % (32 * K2_RS))
    a("s_add_u32 s15, s15, %d" % K2_STG)
    a("v_and_b32 v3, 15, v1")
    a("v_lshrrev_b32 v4, 4, v1")
    a("v_mul_u32_u24 v5, %d, v3" % K2_RS)
    a("v_lshl_add_u32 v5, v4, 4, v5")
    a("v_add_u32 v3, s15, v5")
    a("s_lshl_b32 s16, s6, 7")
    a("s_lshl_b32 s17, s3, 5")
    a("s_add_u32 s16, s16, s17")
    a("s_mul_i32 s16, s16, 2752")
    a("s_mul_i32 s17, s7, 192")
    a("s_movk_i32 s18, 2752")
    for n in range(6):
        a("v_add_u32 v12, %d, v1" % (64 * n))
        a("v_mul_u32_u24 v13, 0xAAAB, v12")
        a("v_lshrrev_b32 v13, 19, v13")
        a("v_mul_u32_u24 v14, 12, v13")
        a("v_sub_u32 v14, v12, v14")
        a("v_mul_u32_u24 v15, %d, v13" % K2_RS)
        a("v_lshl_add_u32 v15, v14, 4, v15")
        a("v_add_u32 v%d, s15, v15" % (240 + n))
        a("v_lshl_add_u32 v14, v14, 4, s17")
        a("v_mul_u32_u24 v15, 2752, v13")
        a("v_add3_u32 v15, v15, v14, s16")
        a("v_cmp_gt_u32 vcc, s18, v14")
        a("v_mov_b32 v13, 0x7fffffff")
        a("s_nop 0")
        a("v_cndmask_b32 v%d, v13, v15, vcc" % (246 + n))
    def acc(ts, g):
        return 192 + (ts * 6 + g) * 4
    def AF(buf, g):
        return 16 + buf * 24 + g * 4
    a("v_add_u32 v10, 0x10000, v2")
    def rd(T, buf):
        for g in range(6):
            off = (T * 6 + g) * 1024
            if off < 65536:
                a("ds_read_b128 %s, v2 offset:%d" % (vr(AF(buf, g)), off))
            else:
                a("ds_read_b128 %s, v10 offset:%d" % (vr(AF(buf, g)), off - 65536))
    def mm(T, buf, pend):
        cnt = 0
        for g in range(6):
            for ts in range(2):
                cc = "0" if T == 0 else vr(acc(ts, g))
                a("%s %s, %s, %s, %s" % (MFMA, vr(acc(ts, g)), vr(AF(buf, g)), vr(X(ts, T)), cc))
                cnt += 1
                if cnt % 3 == 0 and pend:
                    for x in pend.pop(0): a(x)
    def issued_upto(c):
        return min(c - 1 + PD, NC - 1)
    a("s_waitcnt vmcnt(%d)" % (7 * (PD - 1)))
    a("s_barrier")
    rd(0, 0); rd(1, 1)
    for c in range(NC):
        a.c("chunk %d" % c)
        pend = issue_list(c + PD) if c + PD < NC else []
        a("s_waitcnt lgkmcnt(6)")
        mm(2 * c, 0, pend)
        n_issued_now = (7 - len(pend)) if c + PD < NC else 0
        if c + 1 < NC:
            full = max(0, min(c + PD - 1, NC - 1) - (c + 1))
            a("s_waitcnt vmcnt(%d)" % (7 * full + n_issued_now))
            a("s_barrier")
            rd(2 * c + 2, 0)
            a("s_waitcnt lgkmcnt(6)")
        else:
            a("s_waitcnt lgkmcnt(0)")
        mm(2 * c + 1, 1, pend)
        assert not pend
        if c + 1 < NC:
            rd(2 * c + 3, 1)
    a("s_nop 7")
    for ts in range(2):
        for tp in range(3):
            d = 16 + (ts * 3 + tp) * 4
            a0 = acc(ts, 2 * tp); a1 = acc(ts, 2 * tp + 1)
            a("v_cvt_pk_bf16_f32 v%d, v%d, v%d" % (d, a0, a0 + 1))
            a("v_cvt_pk_bf16_f32 v%d, v%d, v%d" % (d + 1, a0 + 2, a0 + 3))
            a("v_cvt_pk_bf16_f32 v%d, v%d, v%d" % (d + 2, a1, a1 + 1))
            a("v_cvt_pk_bf16_f32 v%d, v%d, v%d" % (d + 3, a1 + 2, a1 + 3))
            a("ds_write_b128 v3, %s offset:%d" % (vr(d), ts * 16 * K2_RS + tp * 64))
    for n in range(6):
        a("ds_read_b128 %s, v%d" % (vr(40 + n * 4), 240 + n))
    for n in range(6):
        a("s_waitcnt lgkmcnt(%d)" % (5 - n))
        a("buffer_store_dwordx4 %s, v%d, s[%d:%d], 0 offen" % (vr(40 + n * 4), 246 + n, SO, SO + 3))
    if PROF: a("s_waitcnt vmcnt(0)")
    stamp(a, 12); stamp(a, 13, True)
    stamp_flush(a, 1)
    a.lab("K2_done")
    a("s_endpgm")

HDR = open("cdna_kernels/%s.s.ref" % NAME).read().split("; Override launch")[0]

def kd(name, lds=0, vgpr=256, sgpr=102):
    return """.amdhsa_kernel %s
  .amdhsa_next_free_vgpr %d
  .amdhsa_next_free_sgpr %d
  .amdhsa_accum_offset %d
  .amdhsa_group_segment_fixed_size 0
  .amdhsa_kernarg_size 72
  .amdhsa_user_sgpr_count 2
  .amdhsa_user_sgpr_kernarg_segment_ptr 1
  .amdhsa_system_sgpr_workgroup_id_x 1
  .amdhsa_float_denorm_mode_32 3
  .amdhsa_float_denorm_mode_16_64 3
.end_amdhsa_kernel
""" % (name, vgpr, sgpr, min(256, (vgpr + 3) // 4 * 4))

def main(out):
    a = A()
    s = HDR
    if FUSED:
        s += "; @launch grid=(256,1,1) block=(256,1,1) lds=%d\n" % K1_LDS
    else:
        s += "; @launch kernel=%s grid=(256,1,1) block=(256,1,1) lds=%d\n" % (K1, K1_LDS)
        s += "; @launch kernel=%s grid=(256,1,1) block=(256,1,1) lds=%d\n" % (K2, K2_LDS)
    s += '.amdgcn_target "amdgcn-amd-amdhsa--gfx950"\n.text\n'
    s += ".globl %s\n.p2align 8\n.type %s,@function\n" % (K1, K1)
    gen_k1(a)
    s += a.text()
    if not FUSED:
        a = A()
        s += ".globl %s\n.p2align 8\n.type %s,@function\n" % (K2, K2)
        gen_k2(a)
        s += a.text()
    s += '.section .rodata,"a"\n.p2align 6\n'
    if FUSED:
        s += kd(K1, vgpr=448)
    else:
        s += kd(K1, vgpr=320) + ".p2align 6\n" + kd(K2)
    open(out, "w").write(s)

if __name__ == "__main__":
    for arg in sys.argv[2:]:
        if arg == "prof": PROF = True
        elif "=" in arg:
            k_, v_ = arg.split("="); globals()[k_] = int(v_)
    main(sys.argv[1] if len(sys.argv) > 1 else "cdna_kernels/%s.s" % NAME)
```

```python
import sys

NAME = "standalone__weight_only_int_quip__prompt"
K1 = NAME + "_kernel"
K2 = "quip_k2_kernel"

XR_OFF = 0
XR_SIZE = 2048 * 512 * 2
PT_OFF = XR_SIZE
PT_SIZE = 86 * 16 * 1024

class A:
    def __init__(self):
        self.l = []
    def __call__(self, s):
        self.l.append("    " + s)
    def lab(self, s):
        self.l.append(s + ":")
    def c(self, s):
        self.l.append("    ; " + s)
    def text(self):
        return "\n".join(self.l) + "\n"

def vr(b, n=4):
    return "v[%d:%d]" % (b, b + n - 1)
def sr(b, n=4):
    return "s[%d:%d]" % (b, b + n - 1)

def srd(a, d, lo, hi, size):
    a("s_mov_b32 s%d, s%d" % (d, lo))
    a("s_and_b32 s%d, s%d, 0xffff" % (d + 1, hi))
    a("s_mov_b32 s%d, 0x%x" % (d + 2, size))
    a("s_mov_b32 s%d, 0x20000" % (d + 3))

def srd_off(a, d, lo, hi, off, size):
    a("s_add_u32 s%d, s%d, 0x%x" % (d, lo, off))
    a("s_addc_u32 s%d, s%d, 0" % (d + 1, hi))
    a("s_and_b32 s%d, s%d, 0xffff" % (d + 1, d + 1))
    a("s_mov_b32 s%d, 0x%x" % (d + 2, size))
    a("s_mov_b32 s%d, 0x20000" % (d + 3))

MFMA = "v_mfma_f32_16x16x32_bf16"

class VM:
    def __init__(self, a):
        self.a = a; self.ops = []
    def issue(self, tag):
        self.ops.append(tag)
    def wait(self, tag):
        idx = max(i for i, t in enumerate(self.ops) if t == tag)
        n = len(self.ops) - 1 - idx
        assert n <= 63, n
        self.a("s_waitcnt vmcnt(%d)" % n)

def weave(a, prim, fill, vm=None):
    n = len(prim); m = len(fill)
    k = 0
    for i, p in enumerate(prim):
        a(p)
        want = (i + 1) * m // n if n else m
        while k < want:
            emit_group(a, fill[k], vm); k += 1
    while k < m:
        emit_group(a, fill[k], vm); k += 1

def emit_group(a, g, vm):
    for x in g:
        if isinstance(x, tuple):
            a(x[2]); vm.issue(x[1])
        else:
            a(x)
PROF = False
ROT = 4
FUSED = 1
XREARLY = 1
STAT = 0
DBGS = 92
FLG_OFF = 8 << 20
FLGS = 20
ROTA = True
STAMP_OFF = 32 << 20
nst = [0]
def stamp(a, idx=None, real=False):
    if not PROF or idx is None: return
    assert idx < 14
    nst[0] = max(nst[0], idx + 1)
    a("%s s[%d:%d]" % ("s_memrealtime" if real else "s_memtime", 64 + 2 * idx, 65 + 2 * idx))
def stamp_flush(a, kidx):
    if not PROF: return
    a("s_waitcnt lgkmcnt(0)")
    for i in range(14):
        a("v_writelane_b32 v255, s%d, %d" % (64 + 2 * i, i))
    a("s_load_dwordx2 s[96:97], s[0:1], 64")
    a("s_waitcnt lgkmcnt(0)")
    a("s_add_u32 s96, s96, 0x%x" % STAMP_OFF)
    a("s_addc_u32 s97, s97, 0")
    a("s_and_b32 s97, s97, 0xffff")
    a("s_mov_b32 s98, 0x100000")
    a("s_mov_b32 s99, 0x20000")
    a("s_lshl_b32 s100, s2, 2")
    a("s_add_u32 s100, s100, s3")
    a("s_add_u32 s100, s100, %d" % (kidx * 1024))
    a("s_lshl_b32 s100, s100, 6")
    a("v_lshlrev_b32 v254, 2, v1")
    a("v_cmp_gt_u32 vcc, 16, v1")
    a("s_and_saveexec_b64 s[62:63], vcc")
    a("buffer_store_dword v255, v254, s[96:99], s100 offen")
    a("s_mov_b64 exec, s[62:63]")

LDS_A = 131072
LDS_S = 139264
LDS_Z = LDS_S + 6144
K1_LDS = LDS_Z + 6144

def gen_k1(a):
    a.lab(K1)
    a("s_cmp_ge_u32 s2, 256")
    a("s_cbranch_scc1 K1_done")
    a("s_load_dwordx16 s[16:31], s[0:1], 0")
    a("s_load_dwordx2 s[32:33], s[0:1], 64")
    stamp(a, 0, True); stamp(a, 1)
    a("v_and_b32 v1, 63, v0")
    a("v_lshrrev_b32 v2, 6, v0")
    a("s_and_b32 s4, s2, 7")
    a("v_readfirstlane_b32 s3, v2")
    a("s_lshr_b32 s5, s2, 3")
    if FUSED:
        a("s_cmp_lg_u32 s2, 0")
        a("s_cbranch_scc1 K1_notag")
        a("s_cmp_lg_u32 s3, 0")
        a("s_cbranch_scc1 K1_notag")
        a("s_memrealtime s[8:9]")
        a("s_waitcnt lgkmcnt(0)")
        srd(a, DBGS, 30, 31, 256)
        a("s_or_b32 s8, s8, 1")
        a("v_mov_b32 v3, s8")
        a("v_mov_b32 v2, 0")
        a("s_mov_b64 exec, 1")
        a("buffer_store_dword v3, v2, s[%d:%d], 0 offen sc1" % (DBGS, DBGS + 3))
        a("s_mov_b64 exec, -1")
        a.lab("K1_notag")
        a("s_and_b32 s34, s4, 3")
        a("s_lshl_b32 s34, s34, 2")
        a("s_and_b32 s35, s5, 3")
        a("s_add_u32 s34, s34, s35")
        a("s_lshr_b32 s35, s4, 2")
        a("s_lshl_b32 s35, s35, 3")
        a("s_lshr_b32 s8, s5, 2")
        a("s_add_u32 s35, s35, s8")
    a("s_cmp_ge_u32 s5, 30")
    a("s_cbranch_scc1 %s" % ("K1_nop1" if FUSED else "K1_done"))
    a("s_cmp_ge_u32 s5, 22")
    a("s_cbranch_scc1 K1_a")
    gen_1b(a)
    a.lab("K1_a")
    gen_1a(a)
    if FUSED:
        a.lab("K1_nop1")
        a("s_waitcnt lgkmcnt(0)")
        srd(a, DBGS, 30, 31, 256)
        early_sync_loads(a)
        a("s_waitcnt vmcnt(0)")
        get_tag(a, "NP")
        a.lab("PH2")
        gen_ph2(a)
    a.lab("K1_done")
    a("s_endpgm")

def early_sync_groups():
    g = ["s_add_u32 s%d, s32, 0x%x" % (FLGS, FLG_OFF), "s_addc_u32 s%d, s33, 0" % (FLGS + 1),
         "s_and_b32 s%d, s%d, 0xffff" % (FLGS + 1, FLGS + 1), "s_mov_b32 s%d, 4096" % (FLGS + 2), "s_mov_b32 s%d, 0x20000" % (FLGS + 3),
         "v_mov_b32 v211, 0",
         ("vm", "sync", "buffer_load_dword v209, v211, s[%d:%d], 0 offen sc1" % (DBGS, DBGS + 3)),
         "s_add_u32 s8, s34, 16", "s_lshl_b32 s8, s8, 7",
         "v_and_b32 v212, 3, v1", "v_lshl_add_u32 v212, v212, 2, s8",
         ("vm", "sync", "buffer_load_dword v210, v212, s[%d:%d], 0 offen sc1" % (FLGS, FLGS + 3))]
    return g

def early_sync_loads(a):
    for x in early_sync_groups():
        a(x[2] if isinstance(x, tuple) else x)

XRS = 24
def XA(ts, T):
    return 64 + (ts * 16 + T) * 4
def xr_setup(a):
    srd_off(a, XRS, 32, 33, XR_OFF, XR_SIZE)
    a("v_lshlrev_b32 v213, 4, v1")
    a("s_lshl_b32 s9, s34, 3")
    a("s_lshl_b32 s10, s3, 1")
    a("s_add_u32 s9, s9, s10")
    a("s_lshl_b32 s63, s9, 14")
def xr_groups(T4):
    L = []
    for ts in range(2):
        for tt in range(4):
            g = []
            if tt == 0: g.append("s_add_u32 s9, s63, %d" % (ts * 16384 + T4 * 4096))
            b = XA(ts, 4 * T4 + tt)
            g.append(("vm", "xr", "buffer_load_dwordx4 a[%d:%d], v213, s[%d:%d], s9 offen offset:%d" % (b, b + 3, XRS, XRS + 3, tt * 1024)))
            L.append(g)
    return L

def get_tag(a, name):
    a.lab("%s_tl" % name)
    a("v_readfirstlane_b32 s19, v209")
    a("s_nop 3")
    a("s_cmp_lg_u32 s19, 0")
    a("s_cbranch_scc1 %s_td" % name)
    a("s_sleep 2")
    a("buffer_load_dword v209, v211, s[%d:%d], 0 offen sc1" % (DBGS, DBGS + 3))
    a("s_waitcnt vmcnt(0)")
    a("s_branch %s_tl" % name)
    a.lab("%s_td" % name)

def flag_and_go(a, sflag, name, have_tag=False, target="PH2"):
    a("s_waitcnt vmcnt(0)")
    if not have_tag: get_tag(a, name)
    a("s_barrier")
    a("s_cmp_lg_u32 s3, 0")
    a("s_cbranch_scc1 %s" % target)
    a("v_mov_b32 v2, s%d" % sflag)
    a("v_mov_b32 v3, s19")
    a("s_mov_b64 exec, 1")
    a("buffer_store_dword v3, v2, s[%d:%d], 0 offen sc1" % (FLGS, FLGS + 3))
    a("s_mov_b64 exec, -1")
    a("s_branch %s" % target)

def gen_1b(a):
    SQ, SV, SS, SZ, SP = 36, 40, 44, 48, 52
    a.c("==== 1b: P^T tile (32 e x 128 g) ====")
    a("s_lshr_b32 s6, s4, 1")
    a("s_mul_i32 s6, s6, 22")
    a("s_add_u32 s6, s6, s5")
    a("s_lshr_b32 s7, s6, 3")
    a("s_and_b32 s6, s6, 7")
    a("s_and_b32 s8, s4, 1")
    a("s_lshl_b32 s8, s8, 3")
    a("s_add_u32 s6, s6, s8")
    a("v_lshrrev_b32 v28, 3, v1")
    a("v_and_b32 v29, 7, v1")
    a("v_lshrrev_b32 v30, 4, v1")
    a("v_and_b32 v31, 15, v1")
    a("s_lshr_b32 s9, s6, 2")
    a("s_mul_i32 s9, s9, 2752")
    a("v_lshlrev_b32 v32, 2, v0")
    a("v_add_u32 v32, s9, v32")
    a("s_lshl_b32 s10, s6, 5")
    a("v_add_u32 v33, s10, v28")
    a("s_movk_i32 s11, 5504")
    a("v_mul_lo_u32 v33, v33, s11")
    a("v_lshl_add_u32 v2, v29, 4, v33")
    a("v_add_u32 v3, %d, v2" % (8 * 5504))
    a("v_add_u32 v4, %d, v2" % (16 * 5504))
    a("v_add_u32 v5, %d, v2" % (24 * 5504))
    a("v_lshrrev_b32 v33, 1, v31")
    a("v_xor_b32 v33, v33, v30")
    a("v_and_b32 v34, 1, v1")
    a("v_lshl_or_b32 v35, v33, 1, v34")
    a("v_lshlrev_b32 v35, 4, v35")
    a("v_mul_u32_u24 v36, 2752, v30")
    a("s_lshl_b32 s12, s7, 8")
    a("v_add3_u32 v6, v35, v36, s12")
    a("v_xor_b32 v35, 128, v35")
    a("v_add3_u32 v7, v35, v36, s12")
    a("s_waitcnt lgkmcnt(0)")
    srd(a, SQ, 18, 19, 512 * 5504)
    srd(a, SV, 26, 27, 1376 * 2752)
    srd(a, SS, 20, 21, 4 * 2752)
    srd(a, SZ, 22, 23, 4 * 2752)
    srd_off(a, SP, 32, 33, PT_OFF, PT_SIZE)
    if FUSED: srd(a, DBGS, 30, 31, 256)
    for r in range(3):
        a("buffer_load_dword v%d, v32, s[%d:%d], 0 offen offset:%d" % (40 + r, SS, SS + 3, 1024 * r))
    for r in range(3):
        a("buffer_load_dword v%d, v32, s[%d:%d], 0 offen offset:%d" % (43 + r, SZ, SZ + 3, 1024 * r))
    a("s_lshl_b32 s56, s3, 7")
    a("s_mul_i32 s57, s3, 88064")
    a("s_lshl_b32 s59, s3, 15")

    a("s_add_u32 s61, s6, s7")
    if ROT == 11:
        a("s_cmp_ge_u32 s61, 22")
        a("s_cselect_b32 s60, 22, 0")
        a("s_sub_u32 s61, s61, s60")
        a("s_cmp_ge_u32 s61, 11")
        a("s_cselect_b32 s60, 11, 0")
        a("s_sub_u32 s61, s61, s60")
    elif ROT == 2:
        a("s_and_b32 s61, s61, 1")
        a("s_mul_i32 s61, s61, 5")
    elif ROT == 4:
        a("s_and_b32 s61, s61, 3")
        a("s_mul_i32 s61, s61, 3")
    elif ROT == 3:
        a("s_mul_i32 s60, s61, 11")
        a("s_lshr_b32 s60, s60, 5")
        a("s_mul_i32 s60, s60, 3")
        a("s_sub_u32 s61, s61, s60")
        a("s_mul_i32 s61, s61, 4")
    else:
        a("s_mov_b32 s61, 0")
    a("s_lshl_b32 s61, s61, 9")
    a("s_mov_b32 s60, s61")
    vm = VM(a)
    for r in range(6): vm.issue("tab")
    def adv(r):
        return ["s_add_u32 s%d, s%d, 512" % (r, r), "s_cmp_eq_u32 s%d, 5632" % r, "s_cselect_b32 s%d, 0, s%d" % (r, r)]
    QB = 80
    def grp(k):
        slot = k % 4
        L = []
        for i in range(4):
            g = []
            if i == 0: g.append("s_add_u32 s58, s56, s61")
            g.append(("vm", k, "buffer_load_dwordx4 %s, v%d, s[%d:%d], s58 offen" % (vr(QB + slot * 16 + i * 4), 2 + i, SQ, SQ + 3)))
            L.append(g)
        for b in range(8):
            g = []
            if b == 0:
                g += ["s_mul_i32 s62, s61, 688", "s_add_u32 s62, s62, s57"]
            if b % 4 == 0:
                g.append("s_add_u32 m0, s59, %d" % (slot * 8192 + (b // 4) * 4096))
            g.append("s_add_u32 s58, s62, %d" % (4 * b * 2752 - (b % 4) * 1024))
            g.append(("vm", k, "buffer_load_dwordx4 v%d, s[%d:%d], s58 offen offset:%d lds" % (6 + ((b >> 1) & 1), SV, SV + 3, (b % 4) * 1024)))
            if b == 7: g += adv(61)
            L.append(g)
        return L
    for k in range(2):
        for g in grp(k): emit_group(a, g, vm)
    a("v_bfe_u32 v33, v1, 2, 2")
    a("v_and_b32 v34, 3, v1")
    a("v_lshl_add_u32 v35, v30, 3, v33")
    a("v_lshlrev_b32 v35, 8, v35")
    a("v_and_b32 v36, 1, v30")
    a("v_lshl_add_u32 v36, v36, 2, v33")
    a("v_lshl_add_u32 v35, v36, 5, v35")
    a("v_lshl_add_u32 v35, v34, 3, v35")
    a("v_add_u32 v8, s59, v35")
    for n in range(1, 8):
        a("v_xor_b32 v%d, %d, v8" % (8 + n, n * 32))
    a("s_lshl_b32 s13, s3, 11")
    a("s_add_u32 s13, s13, %d" % LDS_A)
    a("v_lshrrev_b32 v33, 5, v1")
    a("v_lshrrev_b32 v34, 1, v29")
    a("v_and_b32 v35, 1, v29")
    a("v_lshlrev_b32 v35, 3, v35")
    a("v_lshl_add_u32 v35, v28, 6, v35")
    a("v_add_u32 v35, s13, v35")
    for x in range(2):
        a("v_add_u32 v36, %d, v33" % (2 * x))
        a("v_sub_u32 v36, 0, v36")
        a("v_and_b32 v36, 3, v36")
        a("v_xor_b32 v36, v36, v34")
        a("v_lshl_add_u32 v36, v36, 4, v35")
        a("v_add_u32 v%d, %d, v36" % (16 + x, 512 * x))
    a("v_lshrrev_b32 v33, 2, v31")
    a("v_sub_u32 v33, 0, v33")
    a("v_and_b32 v33, 3, v33")
    a("v_xor_b32 v33, v33, v30")
    a("v_lshlrev_b32 v33, 4, v33")
    a("v_lshl_add_u32 v33, v31, 6, v33")
    a("v_add_u32 v18, s13, v33")
    a("s_add_u32 s14, s56, %d" % LDS_S)
    a("v_lshl_add_u32 v19, v29, 4, s14")
    a("v_lshlrev_b32 v46, 3, v0")
    a("v_add_u32 v46, %d, v46" % LDS_S)
    a("s_mov_b32 s15, 0x4b800000")
    stamp(a, 2)
    vm.wait("tab")
    stamp(a, 3)
    for r in range(3):
        a("v_lshlrev_b32 v48, 16, v%d" % (40 + r))
        a("v_and_b32 v49, 0xffff0000, v%d" % (40 + r))
        a("v_lshlrev_b32 v50, 16, v%d" % (43 + r))
        a("v_and_b32 v51, 0xffff0000, v%d" % (43 + r))
        a("v_mul_f32 v52, -v50, v48")
        a("v_mul_f32 v53, -v51, v49")
        a("v_mul_f32 v48, s15, v48")
        a("v_mul_f32 v49, s15, v49")
        a("ds_write_b64 v46, v[48:49] offset:%d" % (r * 2048))
        a("ds_write_b64 v46, v[52:53] offset:%d" % (6144 + r * 2048))
    a("s_waitcnt lgkmcnt(0)")
    a("s_barrier")

    NK = 11
    def acc(t, n):
        return (t * 8 + n) * 4
    def ar(b, n=4):
        return "a[%d:%d]" % (b, b + n - 1)
    def AFR(buf): return 40 if buf == 0 else 144
    def BFR(buf): return 48 if buf == 0 else 152
    def prep(k):
        slot = k % 4; buf = k % 2
        L = []
        L.append(["v_add_u32 v208, s60, v19"] + adv(60) + ["ds_read_b128 v[20:23], v208", "ds_read_b128 v[24:27], v208 offset:6144"])
        for n in range(4):
            L.append(["ds_read_b64_tr_b16 v[%d:%d], v%d offset:%d" % (BFR(buf) + n * 4 + 2 * h, BFR(buf) + n * 4 + 2 * h + 1, 8 + n, slot * 8192 + h * 1024) for h in range(2)])
        first = True
        for i in range(4):
            q = QB + slot * 16 + i * 4
            t = 28 + (i % 2) * 4
            p = 36 + (i % 2) * 2
            g = []
            if first: g.append("s_waitcnt lgkmcnt(8)"); first = False
            for e in range(4):
                g.append("v_fma_mix_f32 v%d, v%d, v%d, v%d op_sel_hi:[1,0,0]" % (t + e, q + e, 20 + e, 24 + e))
            L.append(g[:len(g) - 2]); g = g[len(g) - 2:]
            g.append("v_cvt_pk_bf16_f32 v%d, v%d, v%d" % (p, t, t + 1))
            g.append("v_cvt_pk_bf16_f32 v%d, v%d, v%d" % (p + 1, t + 2, t + 3))
            g.append("ds_write_b64 v%d, v[%d:%d] offset:%d" % (16 + (i & 1), p, p + 1, (i >> 1) * 1024))
            L.append(g)
        L.append(["ds_read_b128 %s, v18" % vr(AFR(buf)), "ds_read_b128 %s, v18 offset:1024" % vr(AFR(buf) + 4)])
        for n in range(4, 8):
            L.append(["ds_read_b64_tr_b16 v[%d:%d], v%d offset:%d" % (BFR(buf) + n * 4 + 2 * h, BFR(buf) + n * 4 + 2 * h + 1, 8 + n, slot * 8192 + h * 1024) for h in range(2)])
        return L
    vm.wait(0)
    for g in prep(0): emit_group(a, g, vm)
    for g in grp(2): emit_group(a, g, vm)
    issued = 3
    for k in range(NK):
        buf = k % 2
        a.c("substep %d" % k)
        mf = []
        for n in range(8):
            for t in range(2):
                c = "0" if k == 0 else ar(acc(t, n))
                mf.append("%s %s, %s, %s, %s" % (MFMA, ar(acc(t, n)), vr(AFR(buf) + 4 * t), vr(BFR(buf) + 4 * n), c))
        a("s_waitcnt lgkmcnt(0)")
        fill = []
        if k + 1 < NK:
            vm.wait(k + 1)
            if k == 0: stamp(a, 4)
            if k == 4: stamp(a, 5)
            fill = prep(k + 1)
        vf = []
        tgt = min(k + 4, NK - 1)
        while issued <= tgt:
            vf += grp(issued); issued += 1
        if FUSED and XREARLY:
            if k == 5:
                vf += [early_sync_groups()]
            if k == 7:
                vm.wait("sync")
                get_tag(a, "FB")
                poll(a, "PXB", 212, 210, False, True, 2)
                xr_setup(a)
            if k >= 7:
                vf += xr_groups(k - 7)
        merged = []
        i = j = 0
        while i < len(fill) or j < len(vf):
            if i < len(fill): merged.append(fill[i]); i += 1
            if j < len(vf) and (j * max(1, len(fill)) <= i * len(vf) or i >= len(fill)):
                merged.append(vf[j]); j += 1
        weave(a, mf, merged, vm)
    stamp(a, 6)
    if FUSED and not XREARLY: early_sync_loads(a)
    a("s_lshl_b32 s13, s3, 12")
    a("v_lshlrev_b32 v2, 4, v1")
    a("v_add_u32 v3, s13, v2")
    a("s_lshl_b32 s13, s3, 14")
    a("v_add_u32 v4, s13, v2")
    a("v_lshrrev_b32 v30, 4, v1")
    a("v_bfe_u32 v5, v1, 2, 1")
    a("v_lshlrev_b32 v5, 14, v5")
    a("v_lshl_add_u32 v5, v30, 8, v5")
    a("v_bfe_u32 v6, v1, 3, 1")
    a("v_lshl_add_u32 v5, v6, 6, v5")
    a("v_and_b32 v6, 3, v1")
    a("v_lshl_add_u32 v5, v6, 4, v5")
    a("s_lshl_b32 s13, s7, 2")
    a("s_add_u32 s13, s13, s3")
    a("s_lshl_b32 s13, s13, 15")
    a("s_lshl_b32 s14, s6, 10")
    a("s_add_u32 s13, s13, s14")
    for d in range(1, 4):
        a("s_add_u32 s14, s3, %d" % d)
        a("s_and_b32 s14, s14, 3")
        a("s_lshl_b32 s14, s14, 12")
        a("v_add_u32 v%d, s14, v4" % (8 + d))
    a("s_barrier")
    for wd in range(4):
        a("s_cmp_eq_u32 s3, %d" % wd)
        a("s_cbranch_scc1 K1b_own%d" % wd)
        for nl in range(2):
            for t in range(2):
                a("ds_write_b128 v3, %s offset:%d" % (ar(acc(t, 2 * wd + nl)), wd * 16384 + (2 * nl + t) * 1024))
        a("s_branch K1b_next%d" % wd)
        a.lab("K1b_own%d" % wd)
        for nl in range(2):
            for t in range(2):
                for j in range(4):
                    a("v_accvgpr_read_b32 v%d, a%d" % (48 + (2 * nl + t) * 4 + j, acc(t, 2 * wd + nl) + j))
        a.lab("K1b_next%d" % wd)
    a("s_waitcnt lgkmcnt(0)")
    a("s_barrier")
    for d in range(1, 4):
        for idx in range(4):
            a("ds_read_b128 %s, v%d offset:%d" % (vr(48 + (d * 4 + idx) * 4), 8 + d, idx * 1024))
    a("s_waitcnt lgkmcnt(8)")
    for j in range(16):
        a("v_add_f32 v%d, v%d, v%d" % (48 + j, 48 + j, 64 + j))
    a("s_waitcnt lgkmcnt(0)")
    for j in range(16):
        a("v_add_f32 v%d, v%d, v%d" % (80 + j, 80 + j, 96 + j))
    for j in range(16):
        a("v_add_f32 v%d, v%d, v%d" % (48 + j, 48 + j, 80 + j))
    for nl in range(2):
        b = 48 + nl * 8
        d = 112 + nl * 4
        for j in range(4):
            a("v_cvt_pk_bf16_f32 v%d, v%d, v%d" % (d + j, b + 2 * j, b + 2 * j + 1))
        a("buffer_store_dwordx4 %s, v5, s[%d:%d], s13 offen offset:%d%s" % (vr(d), SP, SP + 3, nl * 128, " sc1" if FUSED else ""))
    stamp(a, 7)
    if FUSED:
        a("s_lshl_b32 s10, s7, 7")
        a("s_lshl_b32 s11, s6, 2")
        a("s_add_u32 s10, s10, s11")
        flag_and_go(a, 10, "FB2", have_tag=XREARLY, target="PH2B" if XREARLY else "PH2")
        return
    if PROF: a("s_waitcnt vmcnt(0)")
    stamp(a, 12); stamp(a, 13, True)
    stamp_flush(a, 0)
    a("s_endpgm")

def gen_1a(a):
    SX, SU, SO = 36, 40, 44
    a.c("==== 1a: xr tile (128 s x 128 e) ====")
    a("s_sub_u32 s5, s5, 22")
    a("s_and_b32 s6, s5, 1")
    a("s_lshl_b32 s7, s4, 1")
    a("s_add_u32 s6, s6, s7")
    a("s_lshr_b32 s7, s5, 1")
    a("v_lshrrev_b32 v28, 3, v1")
    a("v_and_b32 v29, 7, v1")
    a("v_lshrrev_b32 v30, 4, v1")
    a("v_and_b32 v31, 15, v1")
    a("s_lshl_b32 s8, s6, 7")
    a("s_lshl_b32 s9, s3, 5")
    a("s_add_u32 s8, s8, s9")
    a("v_add_u32 v33, s8, v28")
    a("v_lshlrev_b32 v33, 10, v33")
    a("v_xor_b32 v34, v29, v30")
    a("v_lshl_add_u32 v2, v34, 4, v33")
    a("v_xor_b32 v3, 64, v2")
    a("v_lshrrev_b32 v33, 1, v31")
    a("v_xor_b32 v33, v33, v30")
    a("v_and_b32 v34, 1, v1")
    a("v_lshl_or_b32 v35, v33, 1, v34")
    a("v_lshlrev_b32 v35, 4, v35")
    a("v_lshl_add_u32 v35, v30, 10, v35")
    a("s_lshl_b32 s8, s7, 8")
    a("v_add_u32 v4, s8, v35")
    a("v_xor_b32 v5, 128, v4")
    a("s_waitcnt lgkmcnt(0)")
    srd(a, SX, 16, 17, 2048 * 1024)
    srd(a, SU, 24, 25, 512 * 1024)
    srd_off(a, SO, 32, 33, XR_OFF, XR_SIZE)
    if FUSED: srd(a, DBGS, 30, 31, 256)
    a("s_lshl_b32 s56, s3, 12")
    a("s_lshl_b32 s57, s3, 14")
    a("s_lshl_b32 s61, s7, 1")
    a("s_add_u32 s61, s61, s6")
    a("s_and_b32 s61, s61, 7")
    if not ROTA: a("s_mov_b32 s61, 0")
    def issue_list(kk):
        slot = kk % 4
        L = []
        L.append(["s_lshl_b32 s62, s61, 7",
                  "s_lshl_b32 s63, s61, 16",
                  "s_add_u32 s63, s63, s57",
                  "s_add_u32 m0, s56, %d" % (slot * 32768),
                  "s_mov_b32 s58, s62",
                  "buffer_load_dwordx4 v2, s[%d:%d], s58 offen lds" % (SX, SX + 3)])
        for b in range(1, 4):
            L.append(["s_add_u32 s58, s62, %d" % (7168 * b),
                      "buffer_load_dwordx4 v%d, s[%d:%d], s58 offen offset:%d lds" % (2 + (b & 1), SX, SX + 3, b * 1024)])
        for b in range(4):
            g = []
            if b == 0: g.append("s_add_u32 m0, s56, %d" % (slot * 32768 + 16384))
            g.append("s_add_u32 s58, s63, %d" % (4 * b * 1024 - b * 1024))
            g.append("buffer_load_dwordx4 v%d, s[%d:%d], s58 offen offset:%d lds" % (4 + ((b >> 1) & 1), SU, SU + 3, b * 1024))
            if b == 3: g += ["s_add_u32 s61, s61, 1", "s_and_b32 s61, s61, 7"]
            L.append(g)
        return L
    for kk in range(3):
        for g in issue_list(kk):
            for x in g: a(x)
    a("s_and_b32 s10, s3, 1")
    a("s_lshr_b32 s11, s3, 1")
    a("s_lshl_b32 s12, s11, 13")
    a("v_lshrrev_b32 v33, 1, v31")
    a("v_xor_b32 v33, v33, v30")
    a("v_lshlrev_b32 v33, 4, v33")
    a("v_lshl_add_u32 v33, v31, 7, v33")
    a("v_add_u32 v6, s12, v33")
    a("v_xor_b32 v7, 64, v6")
    a("v_add_u32 v8, 0x10000, v6")
    a("v_add_u32 v9, 0x10000, v7")
    a("v_bfe_u32 v33, v1, 2, 2")
    a("v_and_b32 v34, 3, v1")
    a("v_lshl_add_u32 v35, v30, 3, v33")
    a("v_lshlrev_b32 v35, 8, v35")
    a("v_and_b32 v36, 1, v30")
    a("v_lshl_add_u32 v36, v36, 2, v33")
    a("v_lshl_add_u32 v35, v36, 5, v35")
    a("v_lshl_add_u32 v35, v34, 3, v35")
    a("s_lshl_b32 s12, s10, 7")
    a("v_xor_b32 v35, s12, v35")
    a("v_add_u32 v10, 16384, v35")
    for te in range(1, 4):
        a("v_xor_b32 v%d, %d, v10" % (10 + te, te * 32))
    for te in range(4):
        a("v_add_u32 v%d, 0x10000, v%d" % (14 + te, 10 + te))
    def acc(te, ts):
        return 144 + (te * 4 + ts) * 4
    for kk in range(8):
        slot = kk % 4
        hi = slot // 2
        so = (slot % 2) * 32768
        a.c("1a step %d" % kk)
        a("s_waitcnt vmcnt(%d)" % (8 * (min(kk + 2, 7) - kk)))
        a("s_barrier")
        if kk == 0: stamp(a, 4)
        if kk == 4: stamp(a, 5)
        pend = issue_list(kk + 3) if kk + 3 < 8 else []
        for hh in range(2):
            for te in range(4):
                for h in range(2):
                    r = 32 + hh * 16 + te * 4 + 2 * h
                    a("ds_read_b64_tr_b16 v[%d:%d], v%d offset:%d" % (r, r + 1, 10 + 4 * hi + te, so + hh * 8192 + h * 1024))
            for ts in range(4):
                a("ds_read_b128 %s, v%d offset:%d" % (vr(64 + hh * 16 + ts * 4), 6 + 2 * hi + hh, so + ts * 2048))
        a("s_waitcnt lgkmcnt(12)")
        cnt = 0
        for hh in range(2):
            if hh == 1:
                a("s_waitcnt lgkmcnt(0)")
            for te in range(4):
                for ts in range(4):
                    c = "0" if (kk == 0 and hh == 0) else vr(acc(te, ts))
                    a("%s %s, %s, %s, %s" % (MFMA, vr(acc(te, ts)), vr(32 + hh * 16 + te * 4), vr(64 + hh * 16 + ts * 4), c))
                    cnt += 1
                    if cnt % 3 == 0 and pend:
                        for x in pend.pop(0): a(x)
        assert not pend
    stamp(a, 6)
    if FUSED: early_sync_loads(a)
    a("v_lshlrev_b32 v2, 4, v1")
    a("s_lshl_b32 s12, s6, 3")
    a("s_lshl_b32 s13, s11, 2")
    a("s_add_u32 s12, s12, s13")
    a("s_lshl_b32 s12, s12, 4")
    a("s_lshl_b32 s13, s7, 2")
    a("s_add_u32 s12, s12, s13")
    a("s_lshl_b32 s13, s10, 1")
    a("s_add_u32 s12, s12, s13")
    a("s_lshl_b32 s12, s12, 10")
    a("s_nop 7")
    n = 0
    for ts in range(4):
        a("s_add_u32 s13, s12, %d" % (ts * 16384))
        for m in range(2):
            d = 32 + (n % 4) * 4
            n += 1
            a0 = acc(2 * m, ts); a1 = acc(2 * m + 1, ts)
            a("v_cvt_pk_bf16_f32 v%d, v%d, v%d" % (d, a0, a0 + 1))
            a("v_cvt_pk_bf16_f32 v%d, v%d, v%d" % (d + 1, a0 + 2, a0 + 3))
            a("v_cvt_pk_bf16_f32 v%d, v%d, v%d" % (d + 2, a1, a1 + 1))
            a("v_cvt_pk_bf16_f32 v%d, v%d, v%d" % (d + 3, a1 + 2, a1 + 3))
            a("buffer_store_dwordx4 %s, v2, s[%d:%d], s13 offen offset:%d%s" % (vr(d), SO, SO + 3, m * 1024, " sc1" if FUSED else ""))
    stamp(a, 7)
    if FUSED:
        a("s_add_u32 s10, s6, 16")
        a("s_lshl_b32 s10, s10, 7")
        a("s_lshl_b32 s11, s7, 2")
        a("s_add_u32 s10, s10, s11")
        flag_and_go(a, 10, "FA")
        return
    if PROF: a("s_waitcnt vmcnt(0)")
    stamp(a, 12); stamp(a, 13, True)
    stamp_flush(a, 0)
    a("s_endpgm")

K2_STG = 98304
K2_RS = 208
K2_LDS = K2_STG + 4 * 32 * K2_RS

def poll(a, name, vaddr, vdst, wave0_only, have_early, sleep=1):
    if wave0_only:
        a("s_cmp_lg_u32 s3, 0")
        a("s_cbranch_scc1 %s_done" % name)
    a("s_mov_b32 s8, 0")
    if have_early:
        a("s_branch %s_chk" % name)
    a.lab("%s_loop" % name)
    a("buffer_load_dword v%d, v%d, s[%d:%d], 0 offen sc1" % (vdst, vaddr, FLGS, FLGS + 3))
    a("s_waitcnt vmcnt(0)")
    a.lab("%s_chk" % name)
    a("v_cmp_ne_u32 vcc, s19, v%d" % vdst)
    a("s_nop 4")
    a("s_cbranch_vccz %s_done" % name)
    a("s_sleep %d" % sleep)
    a("s_add_u32 s8, s8, 1")
    a("s_cmp_lt_u32 s8, 0x40000")
    a("s_cbranch_scc1 %s_loop" % name)
    a.lab("%s_done" % name)

def gen_ph2(a):
    SX, SP, SO = 36, 40, 44
    a.c("==== phase 2: y tile (128 s x 96 g) ====")
    stamp(a, 8)
    a("s_cmp_ge_u32 s35, 15")
    a("s_cbranch_scc1 PH2_exit")
    poll(a, "PX", 212, 210, False, True, 2)
    stamp(a, 9)
    xr_setup(a)
    vm = VM(a)
    for T4 in range(4):
        for g in xr_groups(T4): emit_group(a, g, vm)
    a.lab("PH2B")
    srd_off(a, SP, 32, 33, PT_OFF, PT_SIZE)
    srd(a, SO, 28, 29, 2048 * 2752)
    a("v_lshlrev_b32 v2, 4, v1")
    def X(ts, T):
        return XA(ts, T)
    def ar(b, n=4):
        return "a[%d:%d]" % (b, b + n - 1)
    a("s_lshr_b32 s10, s3, 1")
    a("s_and_b32 s11, s3, 1")
    a("s_mul_i32 s12, s35, 6")
    a("s_mul_i32 s13, s11, 3")
    a("s_add_u32 s12, s12, s13")
    a("s_lshl_b32 s12, s12, 4")
    a("s_add_u32 s12, s12, s10")
    a("s_lshl_b32 s12, s12, 10")
    a("s_mul_i32 s14, s10, 6")
    a("s_add_u32 s14, s14, s13")
    a("s_lshl_b32 s14, s14, 10")
    a("s_mul_i32 s16, s35, 96")
    a("s_add_u32 s17, s16, 95")
    a("s_lshr_b32 s16, s16, 7")
    a("s_lshr_b32 s17, s17, 7")
    a("s_min_u32 s17, s17, 10")
    a("s_sub_u32 s17, s17, s16")
    a("s_lshl_b32 s16, s16, 7")
    a("s_lshl_b32 s17, s17, 7")
    a("v_bfe_u32 v12, v1, 4, 1")
    a("v_mul_u32_u24 v12, s17, v12")
    a("v_and_b32 v13, 15, v1")
    a("v_lshl_add_u32 v12, v13, 2, v12")
    a("v_add_u32 v11, s16, v12")
    a("s_mul_i32 s15, s3, %d" % (32 * K2_RS))
    a("s_add_u32 s15, s15, %d" % K2_STG)
    a("v_and_b32 v3, 15, v1")
    a("v_lshrrev_b32 v4, 4, v1")
    a("v_mul_u32_u24 v5, %d, v3" % K2_RS)
    a("v_lshl_add_u32 v5, v4, 4, v5")
    a("v_add_u32 v3, s15, v5")
    a("s_lshl_b32 s16, s34, 7")
    a("s_lshl_b32 s17, s3, 5")
    a("s_add_u32 s16, s16, s17")
    a("s_mul_i32 s16, s16, 2752")
    a("s_mul_i32 s17, s35, 192")
    a("s_movk_i32 s18, 2752")
    for n in range(6):
        a("v_add_u32 v12, %d, v1" % (64 * n))
        a("v_mul_u32_u24 v13, 0xAAAB, v12")
        a("v_lshrrev_b32 v13, 19, v13")
        a("v_mul_u32_u24 v14, 12, v13")
        a("v_sub_u32 v14, v12, v14")
        a("v_mul_u32_u24 v15, %d, v13" % K2_RS)
        a("v_lshl_add_u32 v15, v14, 4, v15")
        a("v_add_u32 v%d, s15, v15" % (240 + n))
        a("v_lshl_add_u32 v14, v14, 4, s17")
        a("v_mul_u32_u24 v15, 2752, v13")
        a("v_add3_u32 v15, v15, v14, s16")
        a("v_cmp_gt_u32 vcc, s18, v14")
        a("v_mov_b32 v13, 0x7fffffff")
        a("s_nop 0")
        a("v_cndmask_b32 v%d, v13, v15, vcc" % (246 + n))
    a("v_add_u32 v10, 0x10000, v2")
    stamp(a, 10)
    poll(a, "PP", 11, 12, True, False, 2)
    a("s_barrier")
    stamp(a, 11)
    NC = 8
    PD = 4
    def issue_list(c):
        L = []
        for i in range(3):
            g = []
            if i == 0: g.append("s_add_u32 m0, s14, %d" % (c * 2 * 6144))
            g.append("s_add_u32 s58, s12, %d" % (c * 2 * 1024 + i * 16384 - i * 1024))
            g.append(("vm", c, "buffer_load_dwordx4 v2, s[%d:%d], s58 offen offset:%d lds" % (SP, SP + 3, i * 1024)))
            L.append(g)
        return L
    for c in range(PD):
        for g in issue_list(c): emit_group(a, g, vm)
    def acc(ts, g):
        return 192 + (ts * 6 + g) * 4
    def AF(buf, g):
        return 16 + buf * 24 + g * 4
    def rd(T, buf):
        for g in range(6):
            off = (T * 6 + g) * 1024
            if off < 65536:
                a("ds_read_b128 %s, v2 offset:%d" % (vr(AF(buf, g)), off))
            else:
                a("ds_read_b128 %s, v10 offset:%d" % (vr(AF(buf, g)), off - 65536))
    def mlist(T, buf):
        L = []
        for g in range(6):
            for ts in range(2):
                cc = "0" if T == 0 else vr(acc(ts, g))
                L.append("%s %s, %s, %s, %s" % (MFMA, vr(acc(ts, g)), vr(AF(buf, g)), ar(X(ts, T)), cc))
        return L
    vm.wait(0)
    a("s_barrier")
    rd(0, 0); rd(1, 1)
    for c in range(NC):
        a.c("chunk %d" % c)
        pend = issue_list(c + PD) if c + PD < NC else []
        a("s_waitcnt lgkmcnt(6)")
        weave(a, mlist(2 * c, 0), pend, vm)
        if c + 1 < NC:
            vm.wait(c + 1)
            a("s_barrier")
            rd(2 * c + 2, 0)
            a("s_waitcnt lgkmcnt(6)")
        else:
            a("s_waitcnt lgkmcnt(0)")
        weave(a, mlist(2 * c + 1, 1), [], vm)
        if c + 1 < NC:
            rd(2 * c + 3, 1)
    a("s_nop 7")
    for ts in range(2):
        for tp in range(3):
            d = 16 + (ts * 3 + tp) * 4
            a0 = acc(ts, 2 * tp); a1 = acc(ts, 2 * tp + 1)
            a("v_cvt_pk_bf16_f32 v%d, v%d, v%d" % (d, a0, a0 + 1))
            a("v_cvt_pk_bf16_f32 v%d, v%d, v%d" % (d + 1, a0 + 2, a0 + 3))
            a("v_cvt_pk_bf16_f32 v%d, v%d, v%d" % (d + 2, a1, a1 + 1))
            a("v_cvt_pk_bf16_f32 v%d, v%d, v%d" % (d + 3, a1 + 2, a1 + 3))
            a("ds_write_b128 v3, %s offset:%d" % (vr(d), ts * 16 * K2_RS + tp * 64))
    for n in range(6):
        a("ds_read_b128 %s, v%d" % (vr(40 + n * 4), 240 + n))
    for n in range(6):
        a("s_waitcnt lgkmcnt(%d)" % (5 - n))
        a("buffer_store_dwordx4 %s, v%d, s[%d:%d], 0 offen" % (vr(40 + n * 4), 246 + n, SO, SO + 3))
    a.lab("PH2_exit")
    if STAT:
        a("s_waitcnt vmcnt(0)")
        a("s_memrealtime s[8:9]")
        a("s_waitcnt lgkmcnt(0)")
        a("s_sub_u32 s8, s8, s19")
        a("v_mov_b32 v3, s8")
        a("v_mov_b32 v2, 4")
        a("s_mov_b64 exec, 1")
        a("buffer_atomic_umax v3, v2, s[%d:%d], 0 offen" % (DBGS, DBGS + 3))
        a("s_mov_b64 exec, -1")
    if PROF: a("s_waitcnt vmcnt(0)")
    stamp(a, 12); stamp(a, 13, True)
    stamp_flush(a, 0)


def gen_k2(a):
    SX, SP, SO = 36, 40, 44
    a.lab(K2)
    a("s_cmp_ge_u32 s2, 256")
    a("s_cbranch_scc1 K2_done")
    a("s_load_dwordx2 s[28:29], s[0:1], 48")
    a("s_load_dwordx2 s[32:33], s[0:1], 64")
    stamp(a, 0, True); stamp(a, 1)
    a("v_and_b32 v1, 63, v0")
    a("v_lshrrev_b32 v2, 6, v0")
    a("s_and_b32 s4, s2, 7")
    a("v_readfirstlane_b32 s3, v2")
    a("s_lshr_b32 s5, s2, 3")
    a("s_and_b32 s6, s4, 3")
    a("s_lshl_b32 s6, s6, 2")
    a("s_and_b32 s7, s5, 3")
    a("s_add_u32 s6, s6, s7")
    a("s_lshr_b32 s7, s4, 2")
    a("s_lshl_b32 s7, s7, 3")
    a("s_lshr_b32 s8, s5, 2")
    a("s_add_u32 s7, s7, s8")
    a("s_cmp_ge_u32 s7, 15")
    a("s_cbranch_scc1 K2_done")
    a("v_lshlrev_b32 v2, 4, v1")
    a("s_lshl_b32 s9, s6, 3")
    a("s_lshl_b32 s10, s3, 1")
    a("s_add_u32 s9, s9, s10")
    a("s_lshl_b32 s9, s9, 14")
    a("s_lshr_b32 s10, s3, 1")
    a("s_and_b32 s11, s3, 1")
    a("s_mul_i32 s12, s7, 6")
    a("s_mul_i32 s13, s11, 3")
    a("s_add_u32 s12, s12, s13")
    a("s_lshl_b32 s12, s12, 4")
    a("s_add_u32 s12, s12, s10")
    a("s_lshl_b32 s12, s12, 10")
    a("s_mul_i32 s14, s10, 6")
    a("s_add_u32 s14, s14, s13")
    a("s_lshl_b32 s14, s14, 10")
    a("s_waitcnt lgkmcnt(0)")
    srd_off(a, SX, 32, 33, XR_OFF, XR_SIZE)
    srd_off(a, SP, 32, 33, PT_OFF, PT_SIZE)
    srd(a, SO, 28, 29, 2048 * 2752)
    def X(ts, T):
        return 64 + (ts * 16 + T) * 4
    NC = 8
    PD = 4
    def issue_list(c):
        L = []
        for i in range(3):
            g = []
            if i == 0: g.append("s_add_u32 m0, s14, %d" % (c * 2 * 6144))
            g.append("s_add_u32 s58, s12, %d" % (c * 2 * 1024 + i * 16384 - i * 1024))
            g.append("buffer_load_dwordx4 v2, s[%d:%d], s58 offen offset:%d lds" % (SP, SP + 3, i * 1024))
            L.append(g)
        for ts in range(2):
            for tt in range(2):
                g = []
                if tt == 0: g.append("s_add_u32 s59, s9, %d" % (ts * 16384 + c * 2048))
                g.append("buffer_load_dwordx4 %s, v2, s[%d:%d], s59 offen offset:%d" % (vr(X(ts, 2 * c + tt)), SX, SX + 3, tt * 1024))
                L.append(g)
        return L
    for c in range(PD):
        for g in issue_list(c):
            for x in g: a(x)
    a("s_mul_i32 s15, s3, %d" % (32 * K2_RS))
    a("s_add_u32 s15, s15, %d" % K2_STG)
    a("v_and_b32 v3, 15, v1")
    a("v_lshrrev_b32 v4, 4, v1")
    a("v_mul_u32_u24 v5, %d, v3" % K2_RS)
    a("v_lshl_add_u32 v5, v4, 4, v5")
    a("v_add_u32 v3, s15, v5")
    a("s_lshl_b32 s16, s6, 7")
    a("s_lshl_b32 s17, s3, 5")
    a("s_add_u32 s16, s16, s17")
    a("s_mul_i32 s16, s16, 2752")
    a("s_mul_i32 s17, s7, 192")
    a("s_movk_i32 s18, 2752")
    for n in range(6):
        a("v_add_u32 v12, %d, v1" % (64 * n))
        a("v_mul_u32_u24 v13, 0xAAAB, v12")
        a("v_lshrrev_b32 v13, 19, v13")
        a("v_mul_u32_u24 v14, 12, v13")
        a("v_sub_u32 v14, v12, v14")
        a("v_mul_u32_u24 v15, %d, v13" % K2_RS)
        a("v_lshl_add_u32 v15, v14, 4, v15")
        a("v_add_u32 v%d, s15, v15" % (240 + n))
        a("v_lshl_add_u32 v14, v14, 4, s17")
        a("v_mul_u32_u24 v15, 2752, v13")
        a("v_add3_u32 v15, v15, v14, s16")
        a("v_cmp_gt_u32 vcc, s18, v14")
        a("v_mov_b32 v13, 0x7fffffff")
        a("s_nop 0")
        a("v_cndmask_b32 v%d, v13, v15, vcc" % (246 + n))
    def acc(ts, g):
        return 192 + (ts * 6 + g) * 4
    def AF(buf, g):
        return 16 + buf * 24 + g * 4
    a("v_add_u32 v10, 0x10000, v2")
    def rd(T, buf):
        for g in range(6):
            off = (T * 6 + g) * 1024
            if off < 65536:
                a("ds_read_b128 %s, v2 offset:%d" % (vr(AF(buf, g)), off))
            else:
                a("ds_read_b128 %s, v10 offset:%d" % (vr(AF(buf, g)), off - 65536))
    def mm(T, buf, pend):
        cnt = 0
        for g in range(6):
            for ts in range(2):
                cc = "0" if T == 0 else vr(acc(ts, g))
                a("%s %s, %s, %s, %s" % (MFMA, vr(acc(ts, g)), vr(AF(buf, g)), vr(X(ts, T)), cc))
                cnt += 1
                if cnt % 3 == 0 and pend:
                    for x in pend.pop(0): a(x)
    def issued_upto(c):
        return min(c - 1 + PD, NC - 1)
    a("s_waitcnt vmcnt(%d)" % (7 * (PD - 1)))
    a("s_barrier")
    rd(0, 0); rd(1, 1)
    for c in range(NC):
        a.c("chunk %d" % c)
        pend = issue_list(c + PD) if c + PD < NC else []
        a("s_waitcnt lgkmcnt(6)")
        mm(2 * c, 0, pend)
        n_issued_now = (7 - len(pend)) if c + PD < NC else 0
        if c + 1 < NC:
            full = max(0, min(c + PD - 1, NC - 1) - (c + 1))
            a("s_waitcnt vmcnt(%d)" % (7 * full + n_issued_now))
            a("s_barrier")
            rd(2 * c + 2, 0)
            a("s_waitcnt lgkmcnt(6)")
        else:
            a("s_waitcnt lgkmcnt(0)")
        mm(2 * c + 1, 1, pend)
        assert not pend
        if c + 1 < NC:
            rd(2 * c + 3, 1)
    a("s_nop 7")
    for ts in range(2):
        for tp in range(3):
            d = 16 + (ts * 3 + tp) * 4
            a0 = acc(ts, 2 * tp); a1 = acc(ts, 2 * tp + 1)
            a("v_cvt_pk_bf16_f32 v%d, v%d, v%d" % (d, a0, a0 + 1))
            a("v_cvt_pk_bf16_f32 v%d, v%d, v%d" % (d + 1, a0 + 2, a0 + 3))
            a("v_cvt_pk_bf16_f32 v%d, v%d, v%d" % (d + 2, a1, a1 + 1))
            a("v_cvt_pk_bf16_f32 v%d, v%d, v%d" % (d + 3, a1 + 2, a1 + 3))
            a("ds_write_b128 v3, %s offset:%d" % (vr(d), ts * 16 * K2_RS + tp * 64))
    for n in range(6):
        a("ds_read_b128 %s, v%d" % (vr(40 + n * 4), 240 + n))
    for n in range(6):
        a("s_waitcnt lgkmcnt(%d)" % (5 - n))
        a("buffer_store_dwordx4 %s, v%d, s[%d:%d], 0 offen" % (vr(40 + n * 4), 246 + n, SO, SO + 3))
    if PROF: a("s_waitcnt vmcnt(0)")
    stamp(a, 12); stamp(a, 13, True)
    stamp_flush(a, 1)
    a.lab("K2_done")
    a("s_endpgm")

HDR = open("cdna_kernels/%s.s.ref" % NAME).read().split("; Override launch")[0]

def kd(name, lds=0, vgpr=256, sgpr=102):
    return """.amdhsa_kernel %s
  .amdhsa_next_free_vgpr %d
  .amdhsa_next_free_sgpr %d
  .amdhsa_accum_offset %d
  .amdhsa_group_segment_fixed_size 0
  .amdhsa_kernarg_size 72
  .amdhsa_user_sgpr_count 2
  .amdhsa_user_sgpr_kernarg_segment_ptr 1
  .amdhsa_system_sgpr_workgroup_id_x 1
  .amdhsa_float_denorm_mode_32 3
  .amdhsa_float_denorm_mode_16_64 3
.end_amdhsa_kernel
""" % (name, vgpr, sgpr, min(256, (vgpr + 3) // 4 * 4))

def main(out):
    a = A()
    s = HDR
    if FUSED:
        s += "; @launch grid=(256,1,1) block=(256,1,1) lds=%d\n" % K1_LDS
    else:
        s += "; @launch kernel=%s grid=(256,1,1) block=(256,1,1) lds=%d\n" % (K1, K1_LDS)
        s += "; @launch kernel=%s grid=(256,1,1) block=(256,1,1) lds=%d\n" % (K2, K2_LDS)
    s += '.amdgcn_target "amdgcn-amd-amdhsa--gfx950"\n.text\n'
    s += ".globl %s\n.p2align 8\n.type %s,@function\n" % (K1, K1)
    gen_k1(a)
    s += a.text()
    if not FUSED:
        a = A()
        s += ".globl %s\n.p2align 8\n.type %s,@function\n" % (K2, K2)
        gen_k2(a)
        s += a.text()
    s += '.section .rodata,"a"\n.p2align 6\n'
    if FUSED:
        s += kd(K1, vgpr=448)
    else:
        s += kd(K1, vgpr=320) + ".p2align 6\n" + kd(K2)
    open(out, "w").write(s)

if __name__ == "__main__":
    for arg in sys.argv[2:]:
        if arg == "prof": PROF = True
        elif "=" in arg:
            k_, v_ = arg.split("="); globals()[k_] = int(v_)
    main(sys.argv[1] if len(sys.argv) > 1 else "cdna_kernels/%s.s" % NAME)
```
